```python
import torch

def _softmax(x, axis=-1):
    return torch.softmax(x, dim=axis)
def _gelu(x):
    return torch.nn.functional.gelu(x, approximate="tanh")
def _silu(x):
    return torch.nn.functional.silu(x)
def _sigmoid(x):
    return torch.sigmoid(x)
def _layernorm(x, axis=-1, eps=1e-5):
    m = x.mean(dim=axis, keepdim=True)
    v = x.var(dim=axis, keepdim=True, unbiased=False)
    return (x - m) / torch.sqrt(v + eps)
def _scatter_add(tgt, idx, src, axis=0):
    return tgt.clone().index_add_(axis, idx, src)
def _segment_sum(src, seg, n):
    out = torch.zeros((n,) + src.shape[1:], dtype=src.dtype)
    return out.index_add_(0, seg, src)
def _pad(x, pw):
    flat = tuple(v for pair in reversed(pw) for v in pair)
    return torch.nn.functional.pad(x, flat)

kernel_name = 'gated_mix__mha_block__mixer_token_mlp__prompt'

def setup_inputs():

    _w = (lambda a: (lambda t: t.to(torch.bfloat16) if t.is_floating_point() else t)(torch.as_tensor(a)))
    def _A_setup():
        B, S, D, H = 1, 2048, 640, 32
        return {
            "x": _w((lambda *s: torch.randn(*s, dtype=torch.bfloat16) * 0.05)(B, S, D)),
            "wqkv": _w((lambda *s: torch.randn(*s, dtype=torch.bfloat16) * 0.8)(D, 3 * D)),
            "wo": _w((lambda *s: torch.randn(*s, dtype=torch.bfloat16) * 0.05)(D, D)),
        }
    _A_in = _A_setup()

    def _B_setup():
        B, S, D, F = 1, 2048, 640, 1536
        return {
            "x": _w((lambda *s: torch.randn(*s, dtype=torch.bfloat16) * 0.05)(B, S, D)),
            "w1": _w((lambda *s: torch.randn(*s, dtype=torch.bfloat16) * 0.8)(S, F) * (S ** -0.5)),
            "b1": _w((lambda *s: torch.randn(*s, dtype=torch.bfloat16) * 12.8)(F) * 0.02),
            "w2": _w((lambda *s: torch.randn(*s, dtype=torch.bfloat16) * 0.1)(F, S) * (F ** -0.5)),
            "b2": _w((lambda *s: torch.randn(*s, dtype=torch.bfloat16) * 0.8)(S) * 0.02),
        }
    _B_in = _B_setup()

    return {
        "A_x": _A_in["x"],
        "A_wqkv": _A_in["wqkv"],
        "A_wo": _A_in["wo"],
        "B_x": _B_in["x"],
        "B_w1": _B_in["w1"],
        "B_b1": _B_in["b1"],
        "B_w2": _B_in["w2"],
        "B_b2": _B_in["b2"],
        "gate_w": _w((lambda *s: torch.randn(*s, dtype=torch.bfloat16) * 0.05)(640) * 16.0),
    }

def reference(A_x, A_wqkv, A_wo, B_x, B_w1, B_b1, B_w2, B_b2, gate_w):
    def _A_ref(x, wqkv, wo):
        B, S, D = x.shape
        H = 32
        Dh = D // H
        qkv = (lambda x, *d: x.permute(*d))((x @ wqkv).reshape(B, S, 3, H, Dh), 2, 0, 3, 1, 4)
        q, k, v = qkv[0], qkv[1], qkv[2]
        scores = torch.einsum("bhqd,bhkd->bhqk", q, k) * (Dh ** -0.5)
        p = _softmax(scores, axis=-1)
        o = torch.einsum("bhqk,bhkd->bhqd", p, v)
        return (lambda x, *d: x.permute(*d))(o, 0, 2, 1, 3).reshape(B, S, D) @ wo

    def _B_ref(x, w1, b1, w2, b2):
        B, S, D = x.shape
        h = _layernorm(x, axis=-1)
        u = torch.einsum("bsd,sf->bdf", h, w1) + b1
        u = _gelu(u)
        y = torch.einsum("bdf,fs->bds", u, w2) + b2
        return (lambda x, *d: x.permute(*d))(y, 0, 2, 1)

    x = A_x
    g = _sigmoid((x * gate_w).sum(-1, keepdims=True))
    a = _A_ref(x, A_wqkv, A_wo)
    b = _B_ref(x, B_w1, B_b1, B_w2, B_b2)
    return g * a + (1 - g) * b
```

```python
import re, subprocess, os, tempfile

TRANS = ("v_exp_f32", "v_log_f32", "v_rcp_f32", "v_rsq_f32", "v_sqrt_f32", "v_sin_f32", "v_cos_f32")


def regs_of(tok):
    tok = tok.strip()
    tok = tok.lstrip("-")
    m = re.fullmatch(r"abs\((.*)\)", tok)
    if m:
        tok = m.group(1)
    m = re.fullmatch(r"\|(.*)\|", tok)
    if m:
        tok = m.group(1)
    m = re.fullmatch(r"([vsa])(\d+)", tok)
    if m:
        return m.group(1), {int(m.group(2))}
    m = re.fullmatch(r"([vsa])\[(\d+):(\d+)\]", tok)
    if m:
        return m.group(1), set(range(int(m.group(2)), int(m.group(3)) + 1))
    if tok == "vcc":
        return "s", {106, 107}
    if tok == "vcc_lo":
        return "s", {106}
    if tok == "vcc_hi":
        return "s", {107}
    if tok == "m0":
        return "s", {124}
    if tok == "exec":
        return "s", {126, 127}
    return None, set()


class Ins:
    def __init__(self, text):
        self.text = text
        t = text.split(";")[0].strip()
        self.label = None
        self.directive = False
        self.op = None
        if t.endswith(":"):
            self.label = t[:-1]
            return
        if t.startswith(".") or t == "":
            self.directive = True
            return
        parts = t.split(None, 1)
        self.op = parts[0]
        rest = parts[1] if len(parts) > 1 else ""
        ops = [o.strip() for o in rest.split(",")] if rest else []
        mods = ""
        if ops:
            last = ops[-1].split(None, 1)
            joined = rest
            m = re.search(r"\s(offen|offset|op_sel|neg_|row_|quad_perm|sc0|sc1|nt|lds|dst_sel|src0_sel|bitop3|clamp|mul:|div:|idxen|cbsz|blgp|abid)", joined)
            if m:
                mods = joined[m.start():]
                joined = joined[:m.start()]
            ops = [o.strip() for o in joined.split(",")]
        self.ops = ops
        self.mods = mods
        op = self.op
        self.cls = ("mfma" if op.startswith("v_mfma") or op.startswith("v_smfmac") else
                    "valu" if op.startswith("v_") else
                    "vmem" if op.startswith(("buffer_", "global_")) else
                    "ds" if op.startswith("ds_") else
                    "salu")
        self.base = re.sub(r"_(e32|e64|dpp|sdwa)$", "", op)
        self.trans = self.base in TRANS
        self.dpp = "row_" in mods or "quad_perm" in mods or op.endswith("_dpp")
        self.vw, self.vr, self.sw, self.sr = set(), set(), set(), set()
        self.cset = set()
        self.abset = set()

        def add(tok, w):
            k, r = regs_of(tok)
            if k == "v":
                (self.vw if w else self.vr).update(r)
            elif k == "a":
                (self.vw if w else self.vr).update({x + 1000 for x in r})
            elif k == "s":
                (self.sw if w else self.sr).update(r)

        if self.cls == "mfma":
            add(ops[0], True)
            for o in ops[1:]:
                add(o, False)
            k, r = regs_of(ops[3])
            self.cset = set(r) if k == "v" else {x + 1000 for x in r} if k == "a" else set()
            for o in ops[1:3]:
                k, r = regs_of(o)
                self.abset |= set(r) if k == "v" else {x + 1000 for x in r}
            self.passes = 8 if "32x32" in op else 4
        elif self.cls == "valu":
            add(ops[0], True)
            nsrc = 1
            if self.base in ("v_add_co_u32", "v_sub_co_u32", "v_addc_co_u32", "v_mad_u64_u32"):
                add(ops[1], True)
                nsrc = 2
            for o in ops[nsrc:]:
                add(o, False)
            if self.base.startswith(("v_fmac", "v_dot2c", "v_pk_fmac", "v_writelane")):
                add(ops[0], False)
            if self.base.startswith("v_permlane"):
                add(ops[0], False)
                add(ops[1], True)
            if self.dpp:
                add(ops[0], False)
        elif self.cls == "vmem":
            if op.startswith(("buffer_wbl2", "buffer_inv")):
                pass
            elif " lds" in mods:
                for o in ops:
                    add(o, False)
                self.sr.add(124)
            elif "load" in op:
                add(ops[0], True)
                for o in ops[1:]:
                    add(o, False)
            else:
                for o in ops:
                    add(o, False)
                if "atomic" in op and "sc0" in mods:
                    add(ops[0], True)
            self.wide_store = ("store" in op) and op.endswith(("x3", "x4"))
            if self.wide_store:
                idx = 0 if op.startswith("buffer_") else 1
                self.store_data = regs_of(ops[idx])[1]
        elif self.cls == "ds":
            if "read" in op or "rtn" in op or "permute" in op or "swizzle" in op:
                add(ops[0], True)
                for o in ops[1:]:
                    add(o, False)
            else:
                for o in ops:
                    add(o, False)
        else:
            if op.startswith(("s_cmp", "s_cbranch", "s_branch", "s_waitcnt", "s_barrier", "s_nop", "s_sleep", "s_setprio", "s_endpgm", "s_bitcmp")):
                for o in ops:
                    add(o, False)
            else:
                if ops:
                    add(ops[0], True)
                for o in ops[1:]:
                    add(o, False)
                if "saveexec" in op:
                    self.sw.update({126, 127})

    def states(self):
        if self.op == "s_nop":
            return int(self.ops[0], 0) + 1
        return 1


def need(p, c):
    w = 0
    if p.cls == "valu":
        if c.cls == "mfma" and p.vw & c.vr:
            w = max(w, 2)
        if c.cls == "valu":
            if p.trans and not c.trans and p.vw & c.vr:
                w = max(w, 1)
            if c.base in ("v_readfirstlane_b32", "v_readlane_b32") and p.vw & c.vr:
                w = max(w, 1)
            if (c.dpp or c.base.startswith("v_permlane")) and p.vw & c.vr:
                w = max(w, 2)
            if p.sw & c.sr:
                w = max(w, 4 if c.base in ("v_readlane_b32", "v_writelane_b32") else 2)
        if c.cls == "vmem" and p.sw & c.sr:
            w = max(w, 5)
        if c.cls == "salu" and (p.sw & c.sr) and not c.op.startswith("s_cbranch"):
            w = max(w, 1)
    if p.cls == "mfma":
        big = p.passes == 8
        if c.cls in ("valu", "vmem", "ds") and (p.vw & (c.vr | c.vw)):
            w = max(w, 12 if big else 8)
        if c.cls == "mfma":
            if p.vw & c.abset:
                w = max(w, 12 if big else 8)
            if p.vw & c.cset and not (p.vw == c.cset and p.passes == c.passes):
                w = max(w, 10 if big else 6)
            if p.vw & c.vw and not (p.vw == c.vw and p.passes == c.passes):
                w = max(w, 10 if big else 6)
        if c.cls == "valu" and (p.cset & c.vw):
            w = max(w, 7 if big else 3)
    if p.cls == "salu" and 124 in p.sw and c.cls == "vmem" and 124 in c.sr:
        w = max(w, 1)
    if p.cls == "vmem" and getattr(p, "wide_store", False) and (p.store_data & c.vw):
        w = max(w, 2)
    return w


class Asm:
    def __init__(self):
        self.lines = []
        self.uid = 0

    def __call__(self, text):
        for l in text.split("\n"):
            l = l.strip()
            if l:
                self.lines.append(l)

    def label(self, name):
        self.lines.append(name + ":")

    def newlabel(self, base):
        self.uid += 1
        return f"L_{base}_{self.uid}"


def fix_hazards(lines, verbose=False):
    ins = [Ins(l) for l in lines]
    inserted = []
    changed = True
    while changed:
        changed = False
        labels = {x.label: i for i, x in enumerate(ins) if x.label}
        srcs = {}
        for i, x in enumerate(ins):
            if x.op and (x.op.startswith("s_cbranch") or x.op == "s_branch"):
                srcs.setdefault(labels[x.ops[0]], []).append(i)

        def preds(i):
            out = []
            if i > 0:
                p = ins[i - 1]
                if not (p.op in ("s_branch", "s_endpgm")):
                    out.append(i - 1)
            if ins[i].label:
                out += srcs.get(i, [])
            return out

        for i, c in enumerate(ins):
            if not c.op or c.op == "s_nop":
                continue
            worst = 0
            stack = [(p, 0) for p in preds(i)]
            seen = {}
            while stack:
                j, dist = stack.pop()
                if dist >= 12:
                    continue
                if seen.get(j, 99) <= dist:
                    continue
                seen[j] = dist
                p = ins[j]
                d2 = dist
                if p.op:
                    n = need(p, c)
                    if n > dist:
                        worst = max(worst, n - dist)
                    d2 = dist + p.states()
                for q in preds(j):
                    stack.append((q, d2))
            if worst > 0:
                ins.insert(i, Ins(f"s_nop {worst - 1} ; hz"))
                inserted.append((c.text, worst))
                changed = True
                break
    if verbose:
        for t, w in inserted:
            print("  hazard nop", w, "before", t)
    return [x.text for x in ins]


CLANG = "clang"
OBJDUMP = "llvm-objdump"


def sizes_of(lines):
    body = "\n".join(l for l in lines if not l.startswith((".p2align", ";@")))
    src = '.amdgcn_target "amdgcn-amd-amdhsa--gfx950"\n.text\nstart_:\n' + body + "\n"
    d = tempfile.mkdtemp()
    open(d + "/a.s", "w").write(src)
    r = subprocess.run([CLANG, "-x", "assembler", "-target", "amdgcn-amd-amdhsa", "-mcpu=gfx950", "-c", d + "/a.s", "-o", d + "/a.o"], capture_output=True, text=True)
    assert r.returncode == 0, r.stderr
    o = subprocess.run([OBJDUMP, "-d", "--mcpu=gfx950", d + "/a.o"], capture_output=True, text=True).stdout
    sz = []
    for l in o.splitlines():
        m = re.search(r"//\s*([0-9A-F]{12}):((?: [0-9A-F]{8})+)", l)
        if m:
            sz.append(4 * len(m.group(2).split()))
    out = []
    k = 0
    for l in lines:
        x = Ins(l)
        if x.op:
            out.append(sz[k])
            k += 1
        else:
            out.append(0)
    assert k == len(sz), (k, len(sz))
    return out


PROMOTABLE = ("v_exp_f32", "v_rcp_f32", "v_mov_b32", "v_add_f32", "v_mul_f32", "v_max_f32", "v_sub_f32", "v_add_u32", "v_lshlrev_b32", "v_and_b32", "v_rsq_f32", "v_or_b32", "v_xor_b32", "v_lshrrev_b32")


def fix_align(lines, verbose=False):
    sz = sizes_of(lines)
    lines = list(lines)
    hot = False
    par = 0
    cand = None
    bad = 0
    for i, l in enumerate(lines):
        if l.startswith(";@hot"):
            hot = True
            par = 0
            cand = None
            continue
        if l.startswith(";@endhot"):
            hot = False
            continue
        if not hot or sz[i] == 0:
            continue
        if sz[i] == 8:
            if par:
                if cand is not None:
                    op = lines[cand].split(None, 1)
                    lines[cand] = re.sub(r"_e32$", "", op[0]) + "_e64 " + op[1]
                    par = 0
                else:
                    bad += 1
                    if verbose:
                        print("  misaligned 8B:", l)
            cand = None
        else:
            par ^= 1
            x = Ins(l)
            if x.base in PROMOTABLE and not x.dpp:
                cand = i
    if verbose:
        print("misaligned left:", bad)
    return lines
```

```python
import sys, os, struct, math
sys.path.insert(0, os.path.dirname(os.path.abspath(__file__)))
from asmlib import Asm, fix_hazards, fix_align

NAME = "gated_mix__mha_block__mixer_token_mlp__prompt"
OPT = dict(stamps=0, pattern="even", spin=1 << 16, force_fb=0)
for a in sys.argv[2:]:
    k, v = a.split("=")
    OPT[k] = int(v) if v.lstrip("-").isdigit() else v


def f2u(x):
    return struct.unpack("<I", struct.pack("<f", x))[0]


WS_E = 0
FLQ = 0x1000
FLH = FLQ + 0x8000
FLU = FLH + 0x8000
FLO = FLU + 0x20000
GATE = FLO + 0x20000
DBGT = GATE + 0x8000
QK = 0x90000
assert DBGT + 2048 * 64 <= QK
VV = QK + 320 * 16384
VCT = 64 * 8704
HT = VV + 5 * VCT
UU = HT + 256 * 10240
O1 = UU + 96 * 2 * 640 * 16
O2 = O1 + 32 * 2 * 2048 * 16
WS_END = O2 + 32 * 2048 * 8

RINGA = 0
RINGB = 65536
XCH = 131072
CNT = XCH + 4 * 7168
LDS_SIZE = CNT + 64
C_QKV, C_LN, C_LN2, C_G1, C_G2, C_G3, C_G4, C_O0, C_O1 = [4 * i for i in range(9)]

sX, sWQ, sWS = "s[4:7]", "s[8:11]", "s[12:15]"
sW1, sW2, sWO, sB1, sB2, sGW, sOUT, sCODE = ["s[%d:%d]" % (i, i + 3) for i in range(40, 72, 4)]
sNONCE = "s[74:75]"
sW8, sW, sXCD, sI = "s76", "s77", "s78", "s79"
sTT, sCT = "s80", "s81"
STAMP0 = 86

a = Asm()


def v(i, n=1):
    return f"v{i}" if n == 1 else f"v[{i}:{i + n - 1}]"


def srd(dst, lo, nbytes):
    d = int(dst[2:dst.index(":")])
    a(f"s_mov_b32 s{d}, s{lo}\ns_mov_b32 s{d + 1}, s{lo + 1}\ns_mov_b32 s{d + 2}, {nbytes}\ns_mov_b32 s{d + 3}, 0x20000")


def stamp(i):
    if OPT["stamps"]:
        a(f"s_memrealtime s[100:101]\ns_waitcnt lgkmcnt(0)\ns_mov_b32 s{STAMP0 + i}, s100")


def dump_stamps():
    if OPT["stamps"]:
        a(f"s_lshl_b32 s3, s2, 3\ns_add_u32 s3, s3, {sW8}\ns_lshl_b32 s3, s3, 6\ns_add_u32 s3, s3, {DBGT}")
        a("v_mov_b32 v2, 0")
        for q in range(3):
            for r in range(4):
                a(f"v_mov_b32 v{4 + r}, s{STAMP0 + 4 * q + r}")
            a(f"buffer_store_dwordx4 v[4:7], v2, {sWS}, s3 offen offset:{16 * q}")
            a("s_nop 1")


def lds_arrive(cnt, vC, vOne):
    a(f"s_mov_b64 exec, 1\nds_add_u32 {v(vC)}, {v(vOne)} offset:{cnt}\ns_mov_b64 exec, -1")


def lds_wait(cnt, n, vC, vT, sleep=1):
    L, Ld = a.newlabel("lw"), a.newlabel("lwd")
    a(f"s_mov_b32 s82, {OPT['spin'] * 4}")
    a.label(L)
    a(f"ds_read_b32 {v(vT)}, {v(vC)} offset:{cnt}\ns_waitcnt lgkmcnt(0)\nv_readfirstlane_b32 s3, {v(vT)}")
    a(f"s_cmp_ge_u32 s3, {n}\ns_cbranch_scc1 {Ld}")
    if sleep:
        a(f"s_sleep {sleep}")
    a(f"s_sub_u32 s82, s82, 1\ns_cmp_lg_u32 s82, 0\ns_cbranch_scc1 {L}")
    a.label(Ld)


def poll(vA, vT, sleep=2):
    L, Ld = a.newlabel("po"), a.newlabel("pod")
    a(f"s_mov_b32 s82, {OPT['spin']}")
    a.label(L)
    a(f"buffer_load_dwordx2 {v(vT, 2)}, {v(vA)}, {sWS}, 0 offen sc1\ns_waitcnt vmcnt(0)")
    a(f"v_cmp_ne_u64 vcc, {sNONCE}, {v(vT, 2)}\ns_cbranch_vccz {Ld}")
    if sleep:
        a(f"s_sleep {sleep}")
    a(f"s_sub_u32 s82, s82, 1\ns_cmp_lg_u32 s82, 0\ns_cbranch_scc1 {L}")
    a.label(Ld)


def set_flag(soff, vT):
    a(f"v_mov_b32 {v(vT)}, s74\nv_mov_b32 {v(vT + 1)}, s75\nv_mov_b32 {v(vT + 2)}, 0")
    a(f"s_mov_b64 exec, 1\nbuffer_store_dwordx2 {v(vT, 2)}, {v(vT + 2)}, {sWS}, {soff} offen sc1\ns_mov_b64 exec, -1")


def mfma32(d, x, y, c=None):
    a(f"v_mfma_f32_32x32x16_bf16 {v(d, 16)}, {v(x, 4)}, {v(y, 4)}, {v(d, 16) if c is None else c}")


def mfma32k8(d, x, y, c=None):
    a(f"v_mfma_f32_32x32x8_bf16 {v(d, 16)}, {v(x, 2)}, {v(y, 2)}, {v(d, 16) if c is None else c}")


def mfma16(d, x, y, c=None):
    a(f"v_mfma_f32_16x16x32_bf16 {v(d, 4)}, {v(x, 4)}, {v(y, 4)}, {v(d, 4) if c is None else c}")


vL = 1
vCN = 254
vONE = 255


def entry():
    a("s_cmp_ge_u32 s2, 256\ns_cbranch_scc1 L_end")
    a("s_load_dwordx16 s[16:31], s[0:1], 0\ns_load_dwordx8 s[32:39], s[0:1], 64")
    a("v_lshrrev_b32 v2, 6, v0\nv_and_b32 v1, 63, v0")
    a(f"v_readfirstlane_b32 {sW8}, v2")
    stamp(0)
    a(f"s_and_b32 {sXCD}, s2, 7\ns_lshr_b32 {sI}, s2, 3")
    a(f"s_and_b32 {sW}, {sW8}, 3")
    a(f"s_lshr_b32 s3, {sXCD}, 1\ns_lshl_b32 s3, s3, 2\ns_and_b32 {sTT}, {sI}, 3\ns_add_u32 {sTT}, {sTT}, s3")
    a(f"s_and_b32 s3, {sXCD}, 1\ns_lshl_b32 s3, s3, 3\ns_lshr_b32 {sCT}, {sI}, 2\ns_add_u32 {sCT}, {sCT}, s3")
    a(f"v_mov_b32 {v(vCN)}, {CNT}\nv_mov_b32 {v(vONE)}, 1")
    a(f"s_cmp_ge_u32 {sW8}, 4\ns_cbranch_scc1 L_G")


def build_ws_and_nonce_load():
    srd(sWS, 38, WS_END)
    a(f"s_load_dwordx2 s[72:73], s[38:39], {WS_E}")


def make_nonce():
    a("s_mul_i32 s74, s72, 1664525\ns_add_u32 s74, s74, 1013904223")
    a("s_mul_i32 s75, s73, 22695477\ns_add_u32 s75, s75, 0x3c6ef35f")


ACC = 64
FX = lambda buf, tb: 32 + 16 * buf + 4 * tb
FW = lambda buf, cb: 40 + 16 * buf + 4 * cb
vXA = [2, 3, 4, 5]
vWA = [6, 7]


def qkv_reads(n):
    st, ks, buf = n // 4, n % 4, n & 1
    slot = st % 4
    r = []
    for cb in range(2):
        for p in range(2):
            r.append(f"ds_read_b64_tr_b16 {v(FW(buf, cb) + 2 * p, 2)}, {v(vWA[cb])} offset:{slot * 16384 + (16 * ks + 4 * p) * 256}")
    x = [f"ds_read_b128 {v(FX(buf, tb), 4)}, {v(vXA[ks])} offset:{slot * 16384 + tb * 4096}" for tb in range(2)]
    return [r[0], r[1], x[0], x[1], r[2], r[3]]


def qkv_loop(vmode):
    for r in qkv_reads(0):
        a(r)
    for n in range(40):
        buf = n & 1
        rd = qkv_reads(n + 1) if n < 39 else []
        a("s_waitcnt lgkmcnt(0)")
        order = [(0, 0), (0, 1), (1, 1), (1, 0)]
        for q, (cb, tb) in enumerate(order):
            d = ACC + 16 * (2 * cb + tb)
            c = "0" if n == 0 else None
            if vmode:
                mfma32(d, FX(buf, tb), FW(buf, cb), c)
            else:
                mfma32(d, FW(buf, cb), FX(buf, tb), c)
            if q == 0 and n % 4 == 3:
                a("s_barrier")
            if q < 2:
                for r in rd[3 * q:3 * q + 3]:
                    a(r)


def a_qkv():
    a("s_getpc_b64 s[68:69]\ns_and_b32 s68, s68, 0xffffff00")
    a("s_mov_b32 s70, CODE_BYTES\ns_mov_b32 s71, 0x20000")
    a(f"v_lshlrev_b32 v8, 7, v0\nbuffer_load_dword v253, v8, {sCODE}, 0 offen")
    a(f"v_mov_b32 v9, 0\nv_lshl_add_u32 v10, v1, 2, {v(vCN)}")
    L = a.newlabel("nz")
    a(f"s_cmp_lg_u32 {sW8}, 0\ns_cbranch_scc1 {L}")
    a("s_mov_b64 exec, 0xffff\nds_write_b32 v10, v9\ns_mov_b64 exec, -1")
    a.label(L)
    a(f"s_and_b32 s83, {sW}, 1\ns_lshr_b32 s84, {sW}, 1")
    a("v_and_b32 v8, 31, v1\nv_lshrrev_b32 v9, 5, v1")
    a("v_bfe_u32 v10, v1, 1, 3\nv_xor_b32 v10, v10, v9\nv_lshlrev_b32 v10, 4, v10")
    a("s_lshl_b32 s3, s84, 13\nv_lshl_add_u32 v11, v8, 7, s3")
    for ks in range(4):
        a(f"v_xor_b32 v12, {32 * ks}, v10\nv_add_u32 {v(vXA[ks])}, v11, v12")
    a("v_bfe_u32 v10, v1, 2, 2")
    a("v_lshl_add_u32 v11, v9, 3, v10\nv_lshlrev_b32 v11, 8, v11")
    a("v_bfe_u32 v12, v1, 4, 1\nv_lshl_add_u32 v11, v12, 5, v11")
    a("v_and_b32 v12, 3, v1\nv_lshl_add_u32 v11, v12, 3, v11")
    a(f"v_add_u32 v11, {RINGB}, v11")
    for cb in range(2):
        a(f"s_lshl_b32 s3, s83, 1\ns_add_u32 s3, s3, {cb}\nv_xor_b32 v12, s3, v10\nv_lshl_add_u32 {v(vWA[cb])}, v12, 6, v11")
    a("s_waitcnt lgkmcnt(0)")
    build_ws_and_nonce_load()
    a("s_waitcnt lgkmcnt(0)")
    make_nonce()
    a("s_barrier")
    stamp(1)
    a(f"s_cmp_eq_u32 {sCT}, 15\ns_cbranch_scc1 L_A_att")
    a(f"s_cmp_ge_u32 {sCT}, 10\ns_cbranch_scc1 L_A_v")
    qkv_loop(False)
    stamp(2)
    a("v_lshlrev_b32 v10, 14, v9\nv_lshl_add_u32 v10, v8, 3, v10")
    a(f"s_lshl_b32 s3, {sCT}, 1\ns_add_u32 s3, s3, s83\ns_lshl_b32 s3, s3, 18")
    a(f"s_lshl_b32 s85, {sTT}, 1\ns_add_u32 s85, s85, s84\ns_lshl_b32 s85, s85, 9\ns_add_u32 s85, s85, s3\ns_add_u32 s85, s85, {QK}")
    L = a.newlabel("noscale")
    a(f"s_cmp_ge_u32 {sCT}, 5\ns_cbranch_scc1 {L}")
    c = f2u(math.log2(math.e) / math.sqrt(20.0))
    a(f"s_mov_b32 s72, {c}\ns_mov_b32 s73, {c}")
    for cb, tb in [(0, 0), (0, 1), (1, 1), (1, 0)]:
        d = ACC + 16 * (2 * cb + tb)
        for r in range(0, 16, 2):
            a(f"v_pk_mul_f32 {v(d + r, 2)}, {v(d + r, 2)}, s[72:73]")
    a.label(L)
    for cb in range(2):
        for g in range(4):
            for tb in range(2):
                d = ACC + 16 * (2 * cb + tb) + 4 * g
                a(f"v_cvt_pk_bf16_f32 {v(d)}, {v(d)}, {v(d + 1)}\nv_cvt_pk_bf16_f32 {v(d + 1)}, {v(d + 2)}, {v(d + 3)}")
                a(f"buffer_store_dwordx2 {v(d, 2)}, v10, {sWS}, s85 offen offset:{256 * tb} sc1")
            a("s_add_u32 s85, s85, 32768")
    a("s_branch L_A_pub")
    a.label("L_A_v")
    qkv_loop(True)
    stamp(2)
    a("v_mul_u32_u24 v10, 4352, v9\nv_lshl_add_u32 v10, v8, 4, v10\ns_lshl_b32 s3, s83, 10\nv_add_u32 v10, s3, v10")
    a(f"s_lshl_b32 s85, {sCT}, 5\ns_lshl_b32 s3, {sTT}, 1\ns_add_u32 s85, s85, s3\ns_add_u32 s85, s85, s84")
    a(f"s_mul_i32 s85, s85, {2 * 8704}\ns_add_u32 s85, s85, {VV - 10 * VCT}\ns_add_u32 s72, s85, 8704")
    for cb, tb in [(0, 0), (0, 1), (1, 1), (1, 0)]:
        for st in range(2):
            d = ACC + 16 * (2 * cb + tb) + 8 * st
            for r in range(4):
                a(f"v_cvt_pk_bf16_f32 {v(d + r)}, {v(d + 2 * r)}, {v(d + 2 * r + 1)}")
            a(f"buffer_store_dwordx4 {v(d, 4)}, v10, {sWS}, {'s72' if tb else 's85'} offen offset:{2176 * st + 512 * cb} sc1")
    a(f"s_cmp_lg_u32 s83, 0\ns_cbranch_scc1 L_A_pub")
    a("v_lshrrev_b32 v11, 3, v1\nv_mul_u32_u24 v11, 2176, v11\nv_and_b32 v12, 7, v1\nv_lshl_add_u32 v11, v12, 4, v11")
    for r in range(4):
        a(f"v_mov_b32 v{12 + r}, 0x3f803f80")
    a(f"buffer_store_dwordx4 v[12:15], v11, {sWS}, s85 offen offset:2048 sc1")
    a.label("L_A_pub")
    a("s_waitcnt vmcnt(0)")
    stamp(3)
    a(f"s_mov_b64 exec, 1\nds_add_rtn_u32 v16, {v(vCN)}, {v(vONE)} offset:{C_QKV}\ns_mov_b64 exec, -1")
    a(f"s_lshl_b32 s85, {sTT}, 4\ns_add_u32 s85, s85, {sCT}\ns_lshl_b32 s85, s85, 7\ns_add_u32 s85, s85, {FLQ}")
    a("s_waitcnt lgkmcnt(0)\nv_readfirstlane_b32 s3, v16\ns_cmp_lg_u32 s3, 3\ns_cbranch_scc1 L_A_att")
    set_flag("s85", 16)


OO = lambda c: 128 + 16 * c
SS = lambda b: 192 + 16 * b
PP = 224
Q1 = lambda c: 32 + 6 * c
Q2 = lambda c: 36 + 6 * c
MM = lambda c: 56 + c
vK1, vK2, vV = 60, 61, 62
KB = lambda b: 64 + 14 * b
sK, sKb, sV, sLOOP, sMODE, sH = "s16", "s17", "s18", "s19", "s20", "s21"


def kv_loads(b, koff):
    B = KB(b)
    return [
        f"buffer_load_dwordx2 {v(B, 2)}, {v(vK1)}, {sWS}, {sK} offen offset:{koff} sc1",
        f"buffer_load_dwordx2 {v(B + 2, 2)}, {v(vK1)}, {sWS}, {sKb} offen offset:{koff} sc1",
        f"buffer_load_dword {v(B + 4)}, {v(vK2)}, {sWS}, {sK} offen offset:{koff} sc1",
        f"buffer_load_dwordx4 {v(B + 6, 4)}, {v(vV)}, {sWS}, {sV} offen sc1",
        f"buffer_load_dwordx4 {v(B + 10, 4)}, {v(vV)}, {sWS}, {sV} offen offset:2176 sc1",
    ]


def maxbody():
    T = [192, 208, 224, 8]
    for c in range(4):
        mfma32(T[c], KB(0), Q1(c), "0")
        mfma32k8(T[c], KB(0) + 4, Q2(c))
    for c in range(4):
        for r in range(0, 16, 2):
            a(f"v_max3_f32 {v(MM(c))}, {v(MM(c))}, {v(T[c] + r)}, {v(T[c] + r + 1)}")


def att_slot(tl, extra):
    c, b = tl & 3, (tl >> 2) & 3
    cn, bn = (tl + 1) & 3, ((tl + 1) >> 2) & 3
    cp, bp = (tl - 1) & 3, ((tl - 1) >> 2) & 3
    S, Sn = SS(tl & 1), SS((tl + 1) & 1)
    ms = [
        lambda: mfma32(Sn, KB(bn), Q1(cn), "0"),
        lambda: mfma32k8(Sn, KB(bn) + 4, Q2(cn)),
        lambda: mfma32(OO(cp), KB(bp) + 10, PP + 4),
        lambda: mfma32(OO(c), KB(b) + 6, PP),
    ]
    for q in range(4):
        ms[q]()
        for x in extra.get(q, []):
            a(x)
        for r in range(4):
            a(f"v_exp_f32 {v(S + 4 * q + r)}, {v(S + 4 * q + r)}")
        for r in range(2):
            a(f"v_cvt_pk_bf16_f32 {v(PP + 2 * q + r)}, {v(S + 4 * q + 2 * r)}, {v(S + 4 * q + 2 * r + 1)}")


def a_att():
    a.label("L_A_att")
    a("s_setprio 3")
    a(f"s_lshl_b32 {sH}, {sXCD}, 2\ns_lshr_b32 s3, {sI}, 3\ns_add_u32 {sH}, {sH}, s3")
    a(f"s_and_b32 s22, {sI}, 7\ns_lshl_b32 s22, s22, 1\ns_add_u32 s22, s22, s84")
    a(f"s_mul_i32 s23, {sH}, 20\ns_add_u32 s24, s23, 19\ns_lshr_b32 s25, s23, 7\ns_lshr_b32 s24, s24, 7")
    a("v_bfe_u32 v10, v1, 3, 1\ns_sub_u32 s3, s24, s25\nv_mul_u32_u24 v10, s3, v10\nv_add_u32 v10, s25, v10")
    a("v_lshrrev_b32 v11, 4, v1\nv_add_u32 v11, 1, v11\nv_mul_u32_u24 v11, 5, v11")
    a("v_and_b32 v12, 7, v1\ns_lshl_b32 s3, s83, 3\nv_add_u32 v12, s3, v12")
    a("v_cmp_gt_u32 vcc, 32, v1\nv_mov_b32 v13, s22")
    a("v_cndmask_b32 v11, 0, v11, vcc\nv_cndmask_b32 v12, v13, v12, vcc")
    a("v_add_u32 v10, v10, v11\nv_lshl_add_u32 v10, v12, 4, v10\nv_lshlrev_b32 v10, 7, v10")
    a(f"v_add_u32 v30, {FLQ}, v10")
    a("v_and_b32 v8, 31, v1\nv_lshrrev_b32 v9, 5, v1")
    a(f"v_lshlrev_b32 {v(vK1)}, 14, v9\nv_lshl_add_u32 {v(vK1)}, v8, 3, {v(vK1)}")
    a(f"v_lshlrev_b32 {v(vK2)}, 2, v9\nv_lshl_add_u32 {v(vK2)}, v8, 3, {v(vK2)}\nv_add_u32 {v(vK2)}, 0x10000, {v(vK2)}")
    a("v_add_u32 v10, s23, v8\nv_lshrrev_b32 v11, 7, v10\nv_and_b32 v10, 127, v10")
    a("v_cmp_gt_u32 vcc, 20, v8\nv_mov_b32 v12, s25\nv_mov_b32 v13, 128")
    a("v_cndmask_b32 v11, v12, v11, vcc\nv_cndmask_b32 v10, v13, v10, vcc")
    a(f"v_mul_u32_u24 v11, {VCT}, v11\nv_lshl_add_u32 v11, v10, 4, v11\nv_mul_u32_u24 v12, 4352, v9\nv_add_u32 {v(vV)}, v11, v12")
    a(f"s_mul_i32 s26, {sH}, {5 * 16384}\ns_add_u32 s26, s26, {QK}")
    a(f"s_lshl_b32 s3, s83, 13\ns_add_u32 s27, s26, s3\ns_add_u32 s27, s27, {160 * 16384}")
    a(f"s_lshl_b32 s3, s22, 10\ns_add_u32 s26, s26, s3")
    a(f"s_mul_i32 s28, s83, {32 * 8704}\ns_add_u32 s28, s28, {VV}")
    a(f"s_mov_b32 {sMODE}, {OPT['force_fb'] & 1}")
    for b in range(4):
        a(f"v_mov_b32 {v(KB(b) + 5)}, 0x3f803f80")
    for r in range(64):
        a(f"v_mov_b32 {v(OO(0) + r)}, 0")
    poll(30, 28, sleep=1)
    stamp(4)
    a("s_lshl_b32 s3, s83, 9\ns_add_u32 s29, s26, s3\ns_xor_b32 s3, s3, 512\ns_add_u32 s30, s26, s3")
    a("s_add_u32 s31, s29, 32768\ns_add_u32 s32, s30, 32768")
    for c in range(4):
        s0, s1 = ("s29", "s31") if c < 2 else ("s30", "s32")
        off = 256 * (c & 1)
        a(f"buffer_load_dwordx2 {v(Q1(c), 2)}, {v(vK1)}, {sWS}, {s0} offen offset:{off} sc1")
        a(f"buffer_load_dwordx2 {v(Q1(c) + 2, 2)}, {v(vK1)}, {sWS}, {s1} offen offset:{off} sc1")
        a(f"buffer_load_dword {v(Q2(c))}, {v(vK2)}, {sWS}, {s0} offen offset:{off} sc1")
    a.label("L_att_start")
    for c in range(4):
        a(f"v_mov_b32 {v(Q2(c) + 1)}, 0\nv_mov_b32 {v(MM(c))}, 0xff800000")
    a(f"s_cmp_eq_u32 {sMODE}, 0\ns_cbranch_scc1 L_att_go")
    a(f"s_add_u32 {sK}, s27, {31 * 256}")
    a.label("L_att_max")
    a(f"s_add_u32 {sKb}, {sK}, 32768")
    for x in kv_loads(0, 0)[:3]:
        a(x)
    a("s_waitcnt vmcnt(0)")
    maxbody()
    a(f"s_sub_u32 {sK}, {sK}, 256\ns_cmp_lg_u32 {sK}, s27\ns_cbranch_scc1 L_att_max")
    for r in range(64):
        a(f"v_mov_b32 {v(OO(0) + r)}, 0")
    a.label("L_att_go")
    a(f"s_mov_b32 {sK}, s27\ns_add_u32 {sKb}, s27, 32768\ns_mov_b32 {sV}, s28")
    for b in range(3):
        for x in kv_loads(b, 256 * b):
            a(x)
        a(f"s_add_u32 {sV}, {sV}, 8704")
    for r in range(4):
        a(f"v_mov_b32 {v(KB(3) + 10 + r)}, 0")
    a("s_waitcnt vmcnt(12)")
    stamp(5)
    maxbody()
    a("v_cmp_gt_u32 vcc, 32, v1")
    for c in range(4):
        a(f"v_mov_b32 v{2 + c}, {v(MM(c))}")
    for c in range(4):
        a(f"v_permlane32_swap_b32 v{2 + c}, {v(MM(c))}")
    for c in range(4):
        a(f"v_max_f32 {v(MM(c))}, v{2 + c}, {v(MM(c))}")
    for c in range(4):
        a(f"v_and_b32 v{2 + c}, 0xffff0000, {v(MM(c))}")
    for c in range(4):
        a(f"v_sub_f32 v{8 + c}, {v(MM(c))}, v{2 + c}")
    for c in range(4):
        a(f"v_and_b32 v{12 + c}, 0xffff0000, v{8 + c}")
    for c in range(4):
        a(f"v_sub_f32 v{8 + c}, v{8 + c}, v{12 + c}")
    for c in range(4):
        a(f"v_cvt_pk_bf16_f32 v{2 + c}, -v{2 + c}, -v{12 + c}")
    for c in range(4):
        a(f"v_cvt_pk_bf16_f32 v{8 + c}, -v{8 + c}, 0")
    for c in range(4):
        a(f"v_cndmask_b32 {v(Q2(c) + 1)}, v{8 + c}, v{2 + c}, vcc")
    mfma32(SS(0), KB(0), Q1(0), "0")
    mfma32k8(SS(0), KB(0) + 4, Q2(0))
    for r in range(4):
        a(f"v_mov_b32 {v(PP + 4 + r)}, 0")
    a(f"s_mov_b32 {sLOOP}, 8\ns_waitcnt vmcnt(10)\ns_nop 7")
    stamp(6)
    a(".p2align 6")
    a(";@hot")
    a.label("L_att_loop")
    for tl in range(16):
        j, c = tl >> 2, tl & 3
        ld = kv_loads((j + 3) & 3, 256 * (j + 3))
        extra = {}
        if c == 0:
            extra = {0: [ld[0]], 2: [ld[1]], 3: [ld[2]]}
        elif c == 1:
            extra = {0: [ld[3]], 2: [ld[4]], 3: [f"s_add_u32 {sV}, {sV}, 8704"]}
        elif c == 2:
            extra = {3: ["s_waitcnt vmcnt(10)"]}
            if j == 3:
                extra[0] = [f"s_add_u32 {sK}, {sK}, 1024"]
                extra[2] = [f"s_add_u32 {sKb}, {sKb}, 1024"]
        elif c == 3 and j == 3:
            extra = {0: [f"s_sub_u32 {sLOOP}, {sLOOP}, 1"], 2: [f"s_cmp_lg_u32 {sLOOP}, 0"]}
        att_slot(tl, extra)
    a("s_cbranch_scc1 L_att_loop")
    a(";@endhot")
    mfma32(OO(3), KB(3) + 10, PP + 4)
    stamp(7)
    a("s_waitcnt vmcnt(0)")
    a(f"v_max3_f32 v2, {v(OO(0) + 12)}, {v(OO(1) + 12)}, {v(OO(2) + 12)}\nv_max_f32 v2, v2, {v(OO(3) + 12)}")
    a(f"v_cmp_lt_f32 vcc, {hex(f2u(2.0 ** 30))}, v2\ns_cbranch_vccz L_att_ok")
    a(f"s_cmp_lg_u32 {sMODE}, 0\ns_cbranch_scc1 L_att_ok\ns_mov_b32 {sMODE}, 1\ns_branch L_att_start")
    a.label("L_att_ok")
    a(f"s_mul_i32 s3, {sW}, 7168\ns_add_u32 s3, s3, {XCH}\nv_lshl_add_u32 v2, v1, 4, s3\nv_lshl_add_u32 v3, v1, 3, s3")
    a(f"s_xor_b32 s29, {sW}, 1\ns_mul_i32 s29, s29, 7168\ns_add_u32 s29, s29, {XCH}\nv_lshl_add_u32 v4, v1, 4, s29\nv_lshl_add_u32 v5, v1, 3, s29")
    for k in range(2):
        a(f"v_mov_b32 {v(OO(2 + k) + 13)}, {v(MM(2 + k))}")
        for q in range(3):
            a(f"ds_write_b128 v2, {v(OO(2 + k) + 4 * q, 4)} offset:{3584 * k + 1024 * q}")
        a(f"ds_write_b64 v3, {v(OO(2 + k) + 12, 2)} offset:{3584 * k + 3072}")
    a(f"s_lshl_b32 s3, s84, 2\nv_add_u32 v6, s3, {v(vCN)}")
    lds_arrive(C_O0, 6, vONE)
    a("v_and_b32 v8, 31, v1\nv_lshrrev_b32 v9, 5, v1")
    a("v_lshlrev_b32 v10, 15, v9\nv_lshl_add_u32 v10, v8, 4, v10")
    a("v_lshlrev_b32 v11, 31, v9\nv_lshl_add_u32 v11, v8, 3, v11")
    a("s_lshl_b32 s30, s22, 1\ns_add_u32 s30, s30, s83")
    a(f"s_lshl_b32 s31, {sH}, 16\ns_lshl_b32 s3, s30, 10\ns_add_u32 s31, s31, s3\ns_add_u32 s31, s31, {O1}")
    a(f"s_lshl_b32 s32, {sH}, 14\ns_lshl_b32 s3, s30, 9\ns_add_u32 s32, s32, s3\ns_add_u32 s32, s32, {O2}")
    a(f"s_lshl_b32 s33, s30, 5\ns_add_u32 s33, s33, {sH}\ns_lshl_b32 s33, s33, 7\ns_add_u32 s33, s33, {FLO}")
    lds_wait(C_O0, 2, 6, 7, sleep=0)
    R = lambda k: 64 + 16 * k
    for k in range(2):
        a(f"ds_read_b64 {v(R(k) + 12, 2)}, v5 offset:{3584 * k + 3072}")
    for k in range(2):
        for q in range(3):
            a(f"ds_read_b128 {v(R(k) + 4 * q, 4)}, v4 offset:{3584 * k + 1024 * q}")
    a("s_waitcnt lgkmcnt(6)")
    for k in range(2):
        t = 12 + 4 * k
        a(f"v_max_f32 v{t}, {v(MM(k))}, {v(R(k) + 13)}")
        a(f"v_sub_f32 v{t + 2}, {v(R(k) + 13)}, v{t}\nv_sub_f32 v{t}, {v(MM(k))}, v{t}")
        a(f"v_exp_f32 v{t}, v{t}\nv_exp_f32 v{t + 2}, v{t + 2}")
    for k in range(2):
        t = 12 + 4 * k
        a(f"v_mul_f32 v{t + 1}, v{t}, {v(OO(k) + 12)}\nv_fma_f32 v{t + 1}, v{t + 2}, {v(R(k) + 12)}, v{t + 1}")
        a(f"v_rcp_f32 v{t + 1}, v{t + 1}")
    for k in range(2):
        t = 12 + 4 * k
        a(f"v_mul_f32 v{t}, v{t}, v{t + 1}\nv_mul_f32 v{t + 2}, v{t + 2}, v{t + 1}")
    for k in range(2):
        t = 12 + 4 * k
        a(f"s_waitcnt lgkmcnt({3 * (1 - k)})")
        for r in range(0, 12, 2):
            a(f"v_pk_mul_f32 {v(OO(k) + r, 2)}, {v(OO(k) + r, 2)}, {v(t, 2)} op_sel_hi:[1,0]")
        for r in range(0, 12, 2):
            a(f"v_pk_fma_f32 {v(OO(k) + r, 2)}, {v(R(k) + r, 2)}, {v(t + 2, 2)}, {v(OO(k) + r, 2)} op_sel_hi:[1,0,1]")
        for r in range(6):
            a(f"v_cvt_pk_bf16_f32 {v(OO(k) + r)}, {v(OO(k) + 2 * r)}, {v(OO(k) + 2 * r + 1)}")
        a(f"buffer_store_dwordx4 {v(OO(k), 4)}, v10, {sWS}, s31 offen offset:{512 * k} sc1")
        a(f"buffer_store_dwordx2 {v(OO(k) + 4, 2)}, v11, {sWS}, s32 offen offset:{256 * k} sc1")
    stamp(8)
    a("s_waitcnt vmcnt(0)")
    set_flag("s33", 16)
    stamp(9)
    dump_stamps()
    a("s_endpgm")


def dma_group(vregs, srdn, soff, m0base):
    a(f"s_mov_b32 m0, {m0base}" if not isinstance(m0base, tuple) else f"s_add_u32 m0, {m0base[0]}, {m0base[1]}")
    for j, r in enumerate(vregs):
        a(f"buffer_load_dwordx4 {v(r)}, {srdn}, {soff} offen offset:{1024 * j} lds")


LNX, LNG = 200, 210


def g_qkv():
    a.label("L_G")
    vXO, vWO = [2, 3, 4, 5], [6, 7, 8, 9]
    a(f"s_lshl_b32 s3, {sTT}, 2\ns_add_u32 s3, s3, {sW}\ns_mul_i32 s3, s3, {32 * 1280}")
    a("v_lshrrev_b32 v10, 3, v1\nv_mul_u32_u24 v10, 1280, v10\nv_add_u32 v10, s3, v10")
    a("v_and_b32 v11, 7, v1\nv_lshrrev_b32 v12, 4, v1\nv_xor_b32 v11, v11, v12")
    for j in range(4):
        if j & 1:
            a("v_xor_b32 v13, 4, v11\nv_lshl_add_u32 v13, v13, 4, v10")
        else:
            a("v_lshl_add_u32 v13, v11, 4, v10")
        a(f"v_add_u32 {v(vXO[j])}, {j * (8 * 1280 - 1024)}, v13")
    a(f"s_mul_i32 s3, {sW}, {16 * 3840}\ns_lshl_b32 s83, {sCT}, 8\ns_add_u32 s3, s3, s83")
    a("v_mul_u32_u24 v10, 3840, v12\nv_add_u32 v10, s3, v10")
    a("v_and_b32 v11, 15, v1\nv_lshlrev_b32 v12, 2, v12\nv_xor_b32 v11, v11, v12\nv_lshl_add_u32 v10, v11, 4, v10")
    for j in range(4):
        a(f"v_add_u32 {v(vWO[j])}, {j * (4 * 3840 - 1024)}, v10")
    a(f"s_lshl_b32 s3, s2, 2\ns_add_u32 s3, s3, {sW}\ns_mul_i32 s3, s3, 2560")
    a("v_lshrrev_b32 v10, 5, v1\nv_mul_u32_u24 v10, 1280, v10\nv_add_u32 v10, s3, v10")
    a("v_and_b32 v11, 31, v1\nv_lshlrev_b32 v14, 4, v11\nv_lshlrev_b32 v15, 3, v11\nv_add_u32 v12, v10, v14\nv_add_u32 v13, v10, v15")
    a(f"s_lshl_b32 s83, {sW}, 12\ns_add_u32 s84, s83, {RINGB}")
    a("s_waitcnt lgkmcnt(0)")
    srd(sX, 16, 2048 * 1280)
    srd(sWQ, 18, 640 * 3840)

    def stage(s):
        a(f"s_mov_b32 s85, {128 * s}")
        dma_group(vXO, sX, "s85", ("s83", 16384 * (s % 4)))
        a(f"s_mov_b32 s85, {64 * 3840 * s}")
        dma_group(vWO, sWQ, "s85", ("s84", 16384 * (s % 4)))

    def ln_loads():
        srd(sGW, 32, 1280)
        a(f"buffer_load_dwordx4 {v(LNX, 4)}, v12, {sX}, 0 offen")
        a(f"buffer_load_dwordx4 {v(LNX + 4, 4)}, v12, {sX}, 0 offen offset:512")
        a(f"buffer_load_dwordx2 {v(LNX + 8, 2)}, v13, {sX}, 0 offen offset:1024")
        a(f"buffer_load_dwordx4 {v(LNG, 4)}, v14, {sGW}, 0 offen")
        a(f"buffer_load_dwordx4 {v(LNG + 4, 4)}, v14, {sGW}, 0 offen offset:512")
        a(f"buffer_load_dwordx2 {v(LNG + 8, 2)}, v15, {sGW}, 0 offen offset:1024")

    def rest():
        build_ws_and_nonce_load()
        srd(sW1, 24, 2048 * 3072)
        srd(sW2, 28, 1536 * 4096)
        srd(sWO, 20, 640 * 1280)
        srd(sB1, 26, 3072)
        srd(sB2, 30, 4096)
        srd(sOUT, 34, 2048 * 1280)
        a("s_waitcnt lgkmcnt(0)")
        make_nonce()

    a(f"s_cmp_eq_u32 {sCT}, 15\ns_cbranch_scc1 L_G_idle")
    for s in range(4):
        stage(s)
    ln_loads()
    rest()
    a("s_waitcnt vmcnt(30)\ns_barrier")
    stamp(1)
    for s in range(1, 10):
        n = {1: 22, 2: 22, 3: 22, 8: 8, 9: 0}.get(s, 16)
        a(f"s_waitcnt vmcnt({n})\ns_barrier")
        if s + 3 <= 9:
            stage(s + 3)
    a("s_barrier\ns_branch L_G_ln")
    a.label("L_G_idle")
    ln_loads()
    rest()
    a("s_barrier\ns_waitcnt vmcnt(0)")


def half_sum(x, t):
    for rot in (8, 4, 2, 1):
        a(f"v_add_f32_dpp {v(x)}, {v(x)}, {v(x)} row_ror:{rot} row_mask:0xf bank_mask:0xf")
    a(f"v_mov_b32 {v(t)}, {v(x)}\nv_permlane16_swap_b32 {v(t)}, {v(x)}\nv_add_f32 {v(x)}, {v(x)}, {v(t)}")


def g_ln():
    a.label("L_G_ln")
    stamp(2)
    X = 160
    for r in range(10):
        a(f"v_lshlrev_b32 {v(X + 2 * r)}, 16, {v(LNX + r)}\nv_and_b32 {v(X + 2 * r + 1)}, 0xffff0000, {v(LNX + r)}")
    a(f"v_add_f32 v16, {v(X)}, {v(X + 1)}")
    for r in range(2, 20):
        a(f"v_add_f32 v16, v16, {v(X + r)}")
    a("v_mov_b32 v17, 0")
    for r in range(10):
        a(f"v_lshlrev_b32 v18, 16, {v(LNG + r)}\nv_and_b32 v19, 0xffff0000, {v(LNG + r)}")
        a(f"v_fmac_f32 v17, v18, {v(X + 2 * r)}\nv_fmac_f32 v17, v19, {v(X + 2 * r + 1)}")
    half_sum(16, 20)
    half_sum(17, 20)
    a(f"v_mul_f32 v16, {hex(f2u(1.0 / 640))}, v16")
    a("v_mov_b32 v18, 0")
    for r in range(20):
        a(f"v_sub_f32 {v(X + r)}, {v(X + r)}, v16")
        a(f"v_fmac_f32 v18, {v(X + r)}, {v(X + r)}")
    half_sum(18, 20)
    a(f"v_mov_b32 v19, {hex(f2u(1e-5))}\nv_fmac_f32 v19, {hex(f2u(1.0 / 640))}, v18\nv_rsq_f32 v19, v19")
    a(f"v_mul_f32 v17, {hex(f2u(-math.log2(math.e)))}, v17\nv_exp_f32 v17, v17")
    for r in range(20):
        a(f"v_mul_f32 {v(X + r)}, v19, {v(X + r)}")
    a("v_add_f32 v17, 1.0, v17\nv_rcp_f32 v17, v17")
    for r in range(10):
        a(f"v_cvt_pk_bf16_f32 {v(LNX + r)}, {v(X + 2 * r)}, {v(X + 2 * r + 1)}")
    a(f"s_mul_i32 s3, {sW}, 2560\ns_add_u32 s3, s3, {RINGB}")
    a("v_lshrrev_b32 v10, 5, v1\nv_mul_u32_u24 v11, 1280, v10\nv_add_u32 v11, s3, v11\nv_add_u32 v12, v11, v14\nv_add_u32 v13, v11, v15")
    a(f"ds_write_b128 v12, {v(LNX, 4)}\nds_write_b128 v12, {v(LNX + 4, 4)} offset:512\nds_write_b64 v13, {v(LNX + 8, 2)} offset:1024")
    lds_arrive(C_LN, vCN, vONE)
    a(f"s_lshl_b32 s3, s2, 7\ns_lshl_b32 s85, {sW}, 3\ns_add_u32 s85, s85, s3\ns_add_u32 s85, s85, {GATE}")
    a("v_lshlrev_b32 v10, 2, v10")
    a("s_mov_b32 exec_lo, 1\ns_mov_b32 exec_hi, 1")
    a(f"buffer_store_dword v17, v10, {sWS}, s85 offen sc1\ns_mov_b64 exec, -1")
    a("v_bfe_u32 v10, v1, 2, 2\nv_mul_u32_u24 v10, 1280, v10\nv_lshrrev_b32 v11, 4, v1\nv_lshl_add_u32 v10, v11, 5, v10")
    a(f"v_and_b32 v11, 3, v1\nv_lshl_add_u32 v10, v11, 3, v10\ns_lshl_b32 s3, {sW}, 7\ns_add_u32 s3, s3, {RINGB}\nv_add_u32 v10, s3, v10")
    a(f"v_lshlrev_b32 v11, 4, v1\ns_mul_i32 s85, s2, 10240\ns_lshl_b32 s3, {sW}, 10\ns_add_u32 s85, s85, s3\ns_add_u32 s85, s85, {HT}")
    lds_wait(C_LN, 4, vCN, 12)
    for k in range(3):
        a(f"ds_read_b64_tr_b16 {v(20 + 4 * k, 2)}, v10 offset:{512 * k}\nds_read_b64_tr_b16 {v(22 + 4 * k, 2)}, v10 offset:{512 * k + 5120}")
    a("s_waitcnt lgkmcnt(0)")
    L = a.newlabel("ln2")
    for k in range(3):
        if k == 2:
            a(f"s_cmp_ge_u32 {sW}, 2\ns_cbranch_scc1 {L}")
        a(f"buffer_store_dwordx4 {v(20 + 4 * k, 4)}, v11, {sWS}, s85 offen sc1\ns_add_u32 s85, s85, 4096")
    a.label(L)
    a("s_waitcnt vmcnt(0)")
    a(f"s_mov_b64 exec, 1\nds_add_rtn_u32 v16, {v(vCN)}, {v(vONE)} offset:{C_LN2}\ns_mov_b64 exec, -1")
    a(f"s_lshl_b32 s85, s2, 7\ns_add_u32 s85, s85, {FLH}")
    L = a.newlabel("ln3")
    a(f"s_waitcnt lgkmcnt(0)\nv_readfirstlane_b32 s3, v16\ns_cmp_lg_u32 s3, 3\ns_cbranch_scc1 {L}")
    set_flag("s85", 16)
    a.label(L)
    stamp(3)


def g_gemm1():
    GA = lambda fb, db: 64 + 16 * (fb + 2 * db)
    HB = lambda slot, ks, db: 128 + 16 * slot + 8 * ks + 4 * db
    WF = lambda buf, fb: 32 + 8 * buf + 4 * fb
    vD = [2, 3, 4, 5]
    vR = [6, 7]
    vH = [8, 9]
    sDT, sFT, sWOFF, sHOFF, sHOFF2, sM0 = "s16", "s17", "s18", "s19", "s22", "s23"
    a(f"s_cmp_ge_u32 {sI}, 30\ns_cbranch_scc1 L_G1_skip")
    a(f"s_mul_i32 {sFT}, {sI}, 52\ns_lshr_b32 {sFT}, {sFT}, 8\ns_mul_i32 s3, {sFT}, 5\ns_sub_u32 {sDT}, {sI}, s3")
    a(f"s_and_b32 s3, {sXCD}, 1\ns_mul_i32 s3, s3, 5\ns_add_u32 {sDT}, {sDT}, s3")
    a(f"s_lshr_b32 s3, {sXCD}, 1\ns_mul_i32 s3, s3, 6\ns_add_u32 {sFT}, {sFT}, s3")
    a(f"s_and_b32 s83, {sW}, 1\ns_lshr_b32 s84, {sW}, 1")
    a("v_lshrrev_b32 v10, 3, v1\nv_mul_u32_u24 v10, 3072, v10")
    a("v_bfe_u32 v11, v1, 4, 1\nv_lshlrev_b32 v11, 2, v11\nv_and_b32 v12, 7, v1\nv_xor_b32 v11, v11, v12\nv_lshl_add_u32 v10, v11, 4, v10")
    for j in range(4):
        a(f"v_add_u32 {v(vD[j])}, {j * (8 * 3072 - 1024)}, v10")
    a(f"s_mul_i32 {sWOFF}, {sW}, {512 * 3072}\ns_lshl_b32 s3, {sFT}, 7\ns_add_u32 {sWOFF}, {sWOFF}, s3")
    a(f"s_lshl_b32 {sM0}, {sW}, 14")
    a("v_bfe_u32 v10, v1, 2, 2\nv_lshrrev_b32 v11, 5, v1\nv_lshl_add_u32 v12, v11, 3, v10\nv_lshlrev_b32 v12, 7, v12")
    a("v_bfe_u32 v13, v1, 4, 1\nv_lshl_add_u32 v12, v13, 5, v12\nv_and_b32 v13, 3, v1\nv_lshl_add_u32 v12, v13, 3, v12")
    a(f"v_add_u32 v12, {sM0}, v12\nv_lshrrev_b32 v10, 1, v10\nv_xor_b32 v10, s83, v10")
    a(f"v_lshl_add_u32 {v(vR[0])}, v10, 6, v12\nv_xor_b32 v10, 1, v10\nv_lshl_add_u32 {v(vR[1])}, v10, 6, v12")
    a("v_mul_u32_u24 v10, 10240, v11\nv_and_b32 v12, 31, v1\nv_lshl_add_u32 v10, v12, 4, v10")
    a(f"s_lshl_b32 s3, s84, 9\nv_add_u32 {v(vH[0])}, s3, v10\ns_xor_b32 s3, s3, 512\nv_add_u32 {v(vH[1])}, s3, v10")
    a(f"s_mul_i32 {sHOFF}, {sW}, {64 * 10240}\ns_lshl_b32 s3, {sDT}, 10\ns_add_u32 {sHOFF}, {sHOFF}, s3\ns_add_u32 {sHOFF}, {sHOFF}, {HT}")
    a(f"s_lshl_b32 s3, {sFT}, 1\ns_add_u32 s24, s3, s83\ns_lshl_b32 s3, s24, 6")
    a("v_lshlrev_b32 v10, 30, v11\nv_lshl_add_u32 v10, v12, 1, v10")
    a(f"buffer_load_ushort v16, v10, {sB1}, s3 offen\nv_mov_b32 v17, 0\nv_mov_b32 v18, 0x3f80\nv_mov_b32 v19, 0")

    def issue_w(slot):
        dma_group(vD, sW1, sWOFF, (sM0, 4096 * slot))
        a(f"s_add_u32 {sWOFF}, {sWOFF}, {32 * 3072}")

    def issue_h(slot):
        a(f"s_add_u32 {sHOFF2}, {sHOFF}, 20480")
        for ks in range(2):
            for db in range(2):
                a(f"buffer_load_dwordx4 {v(HB(slot, ks, db), 4)}, {v(vH[db])}, {sWS}, {sHOFF2 if ks else sHOFF} offen sc1")
        a(f"s_add_u32 {sHOFF}, {sHOFF}, 40960")

    def reads(slot, ks):
        return [f"ds_read_b64_tr_b16 {v(WF(ks, fb) + 2 * p, 2)}, {v(vR[fb])} offset:{4096 * slot + (16 * ks + 4 * p) * 128}" for fb in range(2) for p in range(2)]

    for s in range(3):
        issue_w(s)
    a(f"s_lshl_b32 s3, {sW}, 13\ns_add_u32 s3, s3, {FLH}\nv_lshl_add_u32 v10, v1, 7, s3")
    poll(10, 12)
    stamp(4)
    for s in range(3):
        issue_h(s)
    mfma32k8(GA(0, 0), 16, 18, "0")
    for blk in (GA(1, 0), GA(0, 1), GA(1, 1)):
        for r in range(16):
            a(f"v_mov_b32 {v(blk + r)}, 0")
    for s in range(16):
        slot = s % 4
        left = min(15, s + 2) - s
        n = {0: 8, 1: 12}.get(s, 8 * left)
        a(f"s_waitcnt vmcnt({n})")
        for x in reads(slot, 0):
            a(x)
        if s + 3 < 16:
            issue_w((s + 3) % 4)
            issue_h((s + 3) % 4)
        for x in reads(slot, 1):
            a(x)
        for ks in range(2):
            a(f"s_waitcnt lgkmcnt({4 * (1 - ks)})")
            for fb, db in [(0, 0), (0, 1), (1, 1), (1, 0)]:
                mfma32(GA(fb, db), WF(ks, fb), HB(slot, ks, db))
    stamp(5)
    a(f"v_lshlrev_b32 v10, 4, v1\nv_add_u32 v11, {sM0}, v10")
    for k in (1, 2, 3):
        for q in range(4):
            a(f"ds_write_b128 v11, {v(64 + 16 * k + 4 * q, 4)} offset:{4096 * (k - 1) + 1024 * q}")
    lds_arrive(C_G1, vCN, vONE)
    for k in (1, 2, 3):
        a(f"s_xor_b32 s3, {sW}, {k}\ns_lshl_b32 s3, s3, 14\nv_add_u32 v{11 + k}, s3, v10")
    lds_wait(C_G1, 4, vCN, 16)
    for k in (1, 2, 3):
        for q in range(4):
            a(f"ds_read_b128 {v(64 + 16 * k + 4 * q, 4)}, v{11 + k} offset:{4096 * (k - 1) + 1024 * q}")
    for k in (1, 2, 3):
        a(f"s_waitcnt lgkmcnt({4 * (3 - k)})")
        for r in range(0, 16, 2):
            a(f"v_pk_add_f32 {v(64 + r, 2)}, {v(64 + r, 2)}, {v(64 + 16 * k + r, 2)}")
    c1 = -2.0 * math.sqrt(2.0 / math.pi) * math.log2(math.e)
    c2 = c1 * 0.044715
    a(f"s_mov_b32 s26, {hex(f2u(c2))}\ns_mov_b32 s27, {hex(f2u(c2))}\nv_mov_b32 v16, {hex(f2u(c1))}\nv_mov_b32 v17, {hex(f2u(c1))}")
    for r in range(0, 16, 2):
        a(f"v_pk_mul_f32 {v(80 + r, 2)}, {v(64 + r, 2)}, {v(64 + r, 2)}")
    for r in range(0, 16, 2):
        a(f"v_pk_fma_f32 {v(80 + r, 2)}, {v(80 + r, 2)}, s[26:27], v[16:17]")
    for r in range(0, 16, 2):
        a(f"v_pk_mul_f32 {v(80 + r, 2)}, {v(80 + r, 2)}, {v(64 + r, 2)}")
    for r in range(16):
        a(f"v_exp_f32 {v(80 + r)}, {v(80 + r)}")
    for r in range(0, 16, 2):
        a(f"v_pk_add_f32 {v(80 + r, 2)}, {v(80 + r, 2)}, 1.0 op_sel_hi:[1,0]")
    for r in range(16):
        a(f"v_rcp_f32 {v(80 + r)}, {v(80 + r)}")
    for r in range(0, 16, 2):
        a(f"v_pk_mul_f32 {v(64 + r, 2)}, {v(64 + r, 2)}, {v(80 + r, 2)}")
    for r in range(8):
        a(f"v_cvt_pk_bf16_f32 {v(64 + r)}, {v(64 + 2 * r)}, {v(64 + 2 * r + 1)}")
    a(f"s_mul_i32 s85, s24, 40960\ns_lshl_b32 s3, {sDT}, 10\ns_add_u32 s85, s85, s3\ns_add_u32 s85, s85, {UU}\ns_add_u32 s3, s85, 20480")
    a(f"buffer_store_dwordx4 v[64:67], {v(vH[0])}, {sWS}, s85 offen sc1")
    a(f"buffer_store_dwordx4 v[68:71], {v(vH[0])}, {sWS}, s3 offen sc1")
    a(f"s_mul_i32 s85, s24, 20\ns_lshl_b32 s3, {sDT}, 1\ns_add_u32 s85, s85, s3\ns_add_u32 s85, s85, s84\ns_lshl_b32 s85, s85, 7\ns_add_u32 s85, s85, {FLU}")
    a("s_waitcnt vmcnt(0)")
    set_flag("s85", 16)
    a("s_branch L_G2")
    a.label("L_G1_skip")
    lds_arrive(C_G1, vCN, vONE)
    lds_wait(C_G1, 4, vCN, 16)


def g_gemm2():
    a.label("L_G2")
    stamp(6)
    GA = lambda sb, blk: 64 + 20 * sb + 4 * blk
    UB = lambda slot, blk: 144 + 20 * slot + 4 * blk
    WF = lambda sb: 32 + 4 * sb
    vD = [2, 3, 4, 5]
    vR = [6, 7, 8, 9]
    vU = 30
    sSB, sDB, sWOFF, sUOFF, sM0 = "s16", "s17", "s18", "s19", "s23"
    a(f"s_lshl_b32 {sSB}, {sXCD}, 2\ns_lshr_b32 s3, {sI}, 3\ns_add_u32 {sSB}, {sSB}, s3\ns_and_b32 {sDB}, {sI}, 7")
    a("v_lshrrev_b32 v10, 3, v1\nv_lshlrev_b32 v10, 12, v10")
    a("v_lshrrev_b32 v26, 4, v1\nv_lshlrev_b32 v11, 1, v26\nv_and_b32 v12, 7, v1\nv_xor_b32 v11, v11, v12\nv_lshl_add_u32 v10, v11, 4, v10")
    for j in range(4):
        a(f"v_add_u32 {v(vD[j])}, {j * (8 * 4096 - 1024)}, v10")
    a(f"s_mul_i32 {sWOFF}, {sW}, {384 * 4096}\ns_lshl_b32 s3, {sSB}, 7\ns_add_u32 {sWOFF}, {sWOFF}, s3")
    a(f"s_lshl_b32 {sM0}, {sW}, 14\ns_add_u32 {sM0}, {sM0}, {RINGB}")
    a("v_bfe_u32 v10, v1, 2, 3")
    a("v_lshrrev_b32 v11, 5, v1\nv_lshl_add_u32 v11, v11, 4, v10\nv_lshlrev_b32 v11, 7, v11")
    a(f"v_and_b32 v12, 3, v1\nv_lshl_add_u32 v11, v12, 3, v11\nv_add_u32 v11, {sM0}, v11")
    a(f"v_lshrrev_b32 v10, 1, v10\nv_xor_b32 v10, {sW}, v10")
    for sb in range(4):
        a(f"v_xor_b32 v12, {sb}, v10\nv_lshl_add_u32 {v(vR[sb])}, v12, 5, v11")
    a(f"v_mul_u32_u24 v10, 10240, v26\nv_and_b32 v27, 15, v1\nv_lshl_add_u32 {v(vU)}, v27, 4, v10")
    a(f"s_mul_i32 {sUOFF}, {sW}, {12 * 40960}\ns_mul_i32 s3, {sDB}, 1280\ns_add_u32 {sUOFF}, {sUOFF}, s3\ns_add_u32 {sUOFF}, {sUOFF}, {UU}")

    def issue_w(slot):
        dma_group(vD, sW2, sWOFF, (sM0, 4096 * slot))
        a(f"s_add_u32 {sWOFF}, {sWOFF}, {32 * 4096}")

    def issue_u(slot):
        for blk in range(5):
            a(f"buffer_load_dwordx4 {v(UB(slot, blk), 4)}, {v(vU)}, {sWS}, {sUOFF} offen offset:{256 * blk} sc1")
        a(f"s_add_u32 {sUOFF}, {sUOFF}, 40960")

    for s in range(3):
        issue_w(s)
    a("v_mul_u32_u24 v10, 43, v1\nv_lshrrev_b32 v10, 9, v10\nv_mul_u32_u24 v11, 12, v10\nv_sub_u32 v11, v1, v11\nv_min_u32 v10, 2, v10")
    a(f"s_mul_i32 s3, {sW}, 12\nv_add_u32 v11, s3, v11\nv_mul_u32_u24 v11, 20, v11\nv_add_u32 v10, v10, v11")
    a(f"s_mul_i32 s3, {sDB}, 80\ns_lshr_b32 s3, s3, 5\nv_add_u32 v10, s3, v10\nv_lshlrev_b32 v10, 7, v10\nv_add_u32 v10, {FLU}, v10")
    poll(10, 12)
    stamp(7)
    for s in range(3):
        issue_u(s)
    for s in range(12):
        slot = s % 4
        left = min(11, s + 2) - s
        n = {0: 10, 1: 14}.get(s, 9 * left)
        a(f"s_waitcnt vmcnt({n})")
        for sb in range(4):
            for p in range(2):
                a(f"ds_read_b64_tr_b16 {v(WF(sb) + 2 * p, 2)}, {v(vR[sb])} offset:{4096 * slot + 1024 * p}")
        if s + 3 < 12:
            issue_w((s + 3) % 4)
            issue_u((s + 3) % 4)
        for sb in range(4):
            a(f"s_waitcnt lgkmcnt({2 * (3 - sb)})")
            for blk in range(5):
                mfma16(GA(sb, blk), UB(slot, blk), WF(sb), "0" if s == 0 else None)
    stamp(8)
    a(f"s_lshl_b32 s24, {sSB}, 2\ns_add_u32 s24, s24, {sW}")
    a(f"v_lshrrev_b32 v10, 3, v27\nv_lshlrev_b32 v10, 7, v10\nv_and_b32 v11, 7, v27\nv_lshl_add_u32 v10, v11, 2, v10")
    a(f"s_lshl_b32 s3, s24, 8\ns_add_u32 s3, s3, {GATE}\nbuffer_load_dword v20, v10, {sWS}, s3 offen sc1")
    a(f"v_lshlrev_b32 v10, 1, v27\ns_lshl_b32 s3, s24, 5\nbuffer_load_ushort v22, v10, {sB2}, s3 offen")
    a(f"v_lshlrev_b32 v10, 4, v1\nv_add_u32 v11, {sM0}, v10")
    for k in (1, 2, 3):
        for q in range(5):
            a(f"ds_write_b128 v11, {v(GA(k, q), 4)} offset:{5120 * (k - 1) + 1024 * q}")
    lds_arrive(C_G2, vCN, vONE)
    for k in (1, 2, 3):
        a(f"s_xor_b32 s3, {sW}, {k}\ns_lshl_b32 s3, s3, 14\ns_add_u32 s3, s3, {RINGB}\nv_add_u32 v{15 + k}, s3, v10")
    lds_wait(C_G2, 4, vCN, 12)
    for k in (1, 2, 3):
        for q in range(5):
            a(f"ds_read_b128 {v(GA(k, q), 4)}, v{15 + k} offset:{5120 * (k - 1) + 1024 * q}")
    a("s_waitcnt lgkmcnt(0)")
    lds_arrive(C_G3, vCN, vONE)
    for k in (1, 2, 3):
        for r in range(0, 20, 2):
            a(f"v_pk_add_f32 {v(64 + r, 2)}, {v(64 + r, 2)}, {v(64 + 20 * k + r, 2)}")
    a("s_waitcnt vmcnt(0)\nv_lshlrev_b32 v22, 16, v22\nv_sub_f32 v24, 1.0, v20")
    for r in range(0, 20, 2):
        a(f"v_pk_add_f32 {v(64 + r, 2)}, {v(64 + r, 2)}, v[22:23] op_sel_hi:[1,0]")
    for r in range(0, 20, 2):
        a(f"v_pk_mul_f32 {v(64 + r, 2)}, {v(64 + r, 2)}, v[24:25] op_sel_hi:[1,0]")
    vO = [2, 3, 4, 5, 6]
    for j in range(5):
        a(f"v_add_u32 v10, {64 * j}, v1\nv_mul_u32_u24 v11, 205, v10\nv_lshrrev_b32 v11, 11, v11")
        a(f"v_mul_u32_u24 v11, {1280 - 160}, v11\nv_lshl_add_u32 {v(vO[j])}, v10, 4, v11")
        if j in (1, 2, 3):
            a(f"v_subrev_u32 {v(vO[j])}, {1024 * j}, {v(vO[j])}")
    a(f"s_mul_i32 {sWOFF}, {sW}, {160 * 1280}\ns_mul_i32 s3, {sDB}, 160\ns_add_u32 {sWOFF}, {sWOFF}, s3\ns_mul_i32 {sM0}, {sW}, 25600")
    lds_wait(C_G3, 4, vCN, 12)
    for g in range(5):
        dma_group(vO[:4], sWO, sWOFF, (sM0, 5120 * g))
        dma_group(vO[4:], sWO, sWOFF, (sM0, 5120 * g + 4096))
        a(f"s_add_u32 {sWOFF}, {sWOFF}, {32 * 1280}")
    vA1, vA1b, vA2, vA2b = 6, 7, 8, 9
    a("v_bfe_u32 v10, v1, 2, 3\nv_lshrrev_b32 v11, 5, v1\nv_mul_u32_u24 v11, 20, v11\nv_add_u32 v10, v10, v11\nv_mul_u32_u24 v10, 160, v10")
    a("v_and_b32 v12, 3, v1")
    a("s_waitcnt vmcnt(0)")
    lds_arrive(C_G4, vCN, vONE)
    a(f"v_lshl_add_u32 {v(vA1)}, v12, 3, v10\nv_add_u32 {v(vA1b)}, 51200, {v(vA1)}")
    a("v_bfe_u32 v10, v1, 2, 2\nv_mul_u32_u24 v11, 20, v26\nv_add3_u32 v10, v10, v11, 16\nv_mul_u32_u24 v10, 160, v10")
    a(f"v_lshl_add_u32 {v(vA2)}, v12, 3, v10\nv_add_u32 {v(vA2b)}, 51200, {v(vA2)}")
    vO1, vO2 = 2, 3
    a(f"v_lshlrev_b32 v10, 15, v26\nv_lshl_add_u32 {v(vO1)}, v27, 4, v10")
    a(f"v_lshlrev_b32 v10, 14, v26\nv_lshl_add_u32 {v(vO2)}, v27, 3, v10")
    a(f"s_lshl_b32 s26, s24, 8\ns_add_u32 s26, s26, {O1}\ns_lshl_b32 s27, s24, 7\ns_add_u32 s27, s27, {O2}")
    a(f"v_mul_u32_u24 v4, 1280, v27\nv_lshl_add_u32 v4, v26, 3, v4")
    a(f"s_mul_i32 s28, s24, {16 * 1280}\ns_mul_i32 s3, {sDB}, 160\ns_add_u32 s28, s28, s3")
    a(f"v_and_b32 v10, 31, v1\ns_lshl_b32 s3, {sSB}, 12\ns_add_u32 s3, s3, {FLO}\nv_lshl_add_u32 v5, v10, 7, s3")
    AA = lambda blk: 84 + 4 * blk
    OF = lambda t: 104 + 4 * t
    WB = lambda buf, blk: 184 + 20 * buf + 4 * blk

    def wo_reads(t):
        out = []
        for blk in range(5):
            for p in range(2):
                if t < 16:
                    off = (40 * t + 8 * p) * 160 + 32 * blk
                    base = vA1
                    if off >= 51200:
                        off -= 51200
                        base = vA1b
                else:
                    off = (160 * (t - 16) + 80 * p) * 160 + 32 * blk
                    base = vA2
                    if off >= 51200:
                        off -= 51200
                        base = vA2b
                out.append(f"ds_read_b64_tr_b16 {v(WB(t % 3, blk) + 2 * p, 2)}, {v(base)} offset:{off}")
        return out

    lds_wait(C_G4, 4, vCN, 12)
    for t in range(2):
        for x in wo_reads(t):
            a(x)
    stamp(9)
    poll(5, 10, sleep=1)
    stamp(10)
    a("s_setprio 3")
    for t in range(16):
        a(f"buffer_load_dwordx4 {v(OF(t), 4)}, {v(vO1)}, {sWS}, s26 offen sc1\ns_add_u32 s26, s26, 0x20000")
    for t in range(4):
        for p in range(2):
            a(f"buffer_load_dwordx2 {v(OF(16 + t) + 2 * p, 2)}, {v(vO2)}, {sWS}, s27 offen sc1\ns_add_u32 s27, s27, 0x10000")
    for t in range(20):
        nv = 23 - t if t < 16 else 2 * (19 - t)
        rd = wo_reads(t + 2) if t + 2 < 20 else []
        nl = 10 if (0 < t < 19) else 0
        a(f"s_waitcnt vmcnt({nv}) lgkmcnt({nl})")
        for blk in range(5):
            mfma16(AA(blk), WB(t % 3, blk), OF(t), "0" if t == 0 else None)
            for x in rd[2 * blk:2 * blk + 2]:
                a(x)
    for blk in range(5):
        for r in (0, 2):
            a(f"v_pk_fma_f32 {v(64 + 4 * blk + r, 2)}, {v(AA(blk) + r, 2)}, v[20:21], {v(64 + 4 * blk + r, 2)} op_sel_hi:[1,0,1]")
        d = 64 + 4 * blk
        a(f"v_cvt_pk_bf16_f32 {v(d)}, {v(d)}, {v(d + 1)}\nv_cvt_pk_bf16_f32 {v(d + 1)}, {v(d + 2)}, {v(d + 3)}")
        a(f"buffer_store_dwordx2 {v(d, 2)}, v4, {sOUT}, s28 offen offset:{32 * blk}")
    stamp(11)
    L = a.newlabel("noe")
    a(f"s_or_b32 s3, s2, {sW}\ns_cmp_lg_u32 s3, 0\ns_cbranch_scc1 {L}\ns_mov_b32 s85, {WS_E}")
    set_flag("s85", 16)
    a.label(L)
    dump_stamps()
    a.label("L_end")
    a("s_endpgm")


entry()
a_qkv()
a_att()
g_qkv()
g_ln()
g_gemm1()
g_gemm2()

lines = [l.replace("CODE_BYTES", "0x8000") for l in a.lines]
lines = fix_hazards(lines, verbose=bool(OPT.get("v")))
lines = fix_align(lines, verbose=bool(OPT.get("v")))
from asmlib import sizes_of
total = sum(sizes_of(lines)) + 64
code_bytes = total // 128 * 128 - 256
lines = [l.replace("s_mov_b32 s70, 0x8000", f"s_mov_b32 s70, {hex(code_bytes)}") for l in lines]

ref = open(os.path.join(os.path.dirname(os.path.abspath(__file__)), "header.txt")).read()
out = ref
out += f"; @launch grid=(256,1,1) block=(512,1,1) lds={LDS_SIZE}\n"
out += f'.amdgcn_target "amdgcn-amd-amdhsa--gfx950"\n.text\n.globl {NAME}_kernel\n.p2align 8\n.type {NAME}_kernel,@function\n{NAME}_kernel:\n'
for l in lines:
    if l.startswith(";@"):
        continue
    out += (l if l.endswith(":") else "    " + l) + "\n"
out += f""".section .rodata,"a"
.p2align 6
.amdhsa_kernel {NAME}_kernel
  .amdhsa_next_free_vgpr 256
  .amdhsa_next_free_sgpr 102
  .amdhsa_accum_offset 256
  .amdhsa_group_segment_fixed_size 0
  .amdhsa_kernarg_size 96
  .amdhsa_user_sgpr_count 2
  .amdhsa_user_sgpr_kernarg_segment_ptr 1
  .amdhsa_system_sgpr_workgroup_id_x 1
.end_amdhsa_kernel
"""
open(sys.argv[1], "w").write(out)
print("code bytes", total, "lds", LDS_SIZE, "ws_end", hex(WS_END))
```

```python
import re, subprocess, os, tempfile

TRANS = ("v_exp_f32", "v_log_f32", "v_rcp_f32", "v_rsq_f32", "v_sqrt_f32", "v_sin_f32", "v_cos_f32")


def regs_of(tok):
    tok = tok.strip()
    tok = tok.lstrip("-")
    m = re.fullmatch(r"abs\((.*)\)", tok)
    if m:
        tok = m.group(1)
    m = re.fullmatch(r"\|(.*)\|", tok)
    if m:
        tok = m.group(1)
    m = re.fullmatch(r"([vsa])(\d+)", tok)
    if m:
        return m.group(1), {int(m.group(2))}
    m = re.fullmatch(r"([vsa])\[(\d+):(\d+)\]", tok)
    if m:
        return m.group(1), set(range(int(m.group(2)), int(m.group(3)) + 1))
    if tok == "vcc":
        return "s", {106, 107}
    if tok == "vcc_lo":
        return "s", {106}
    if tok == "vcc_hi":
        return "s", {107}
    if tok == "m0":
        return "s", {124}
    if tok == "exec":
        return "s", {126, 127}
    return None, set()


class Ins:
    def __init__(self, text):
        self.text = text
        t = text.split(";")[0].strip()
        self.label = None
        self.directive = False
        self.op = None
        if t.endswith(":"):
            self.label = t[:-1]
            return
        if t.startswith(".") or t == "":
            self.directive = True
            return
        parts = t.split(None, 1)
        self.op = parts[0]
        rest = parts[1] if len(parts) > 1 else ""
        ops = [o.strip() for o in rest.split(",")] if rest else []
        mods = ""
        if ops:
            last = ops[-1].split(None, 1)
            joined = rest
            m = re.search(r"\s(offen|offset|op_sel|neg_|row_|quad_perm|sc0|sc1|nt|lds|dst_sel|src0_sel|bitop3|clamp|mul:|div:|idxen|cbsz|blgp|abid)", joined)
            if m:
                mods = joined[m.start():]
                joined = joined[:m.start()]
            ops = [o.strip() for o in joined.split(",")]
        self.ops = ops
        self.mods = mods
        op = self.op
        self.cls = ("mfma" if op.startswith("v_mfma") or op.startswith("v_smfmac") else
                    "valu" if op.startswith("v_") else
                    "vmem" if op.startswith(("buffer_", "global_")) else
                    "ds" if op.startswith("ds_") else
                    "salu")
        self.base = re.sub(r"_(e32|e64|dpp|sdwa)$", "", op)
        self.trans = self.base in TRANS
        self.dpp = "row_" in mods or "quad_perm" in mods or op.endswith("_dpp")
        self.vw, self.vr, self.sw, self.sr = set(), set(), set(), set()
        self.cset = set()
        self.abset = set()

        def add(tok, w):
            k, r = regs_of(tok)
            if k == "v":
                (self.vw if w else self.vr).update(r)
            elif k == "a":
                (self.vw if w else self.vr).update({x + 1000 for x in r})
            elif k == "s":
                (self.sw if w else self.sr).update(r)

        if self.cls == "mfma":
            add(ops[0], True)
            for o in ops[1:]:
                add(o, False)
            k, r = regs_of(ops[3])
            self.cset = set(r) if k == "v" else {x + 1000 for x in r} if k == "a" else set()
            for o in ops[1:3]:
                k, r = regs_of(o)
                self.abset |= set(r) if k == "v" else {x + 1000 for x in r}
            self.passes = 8 if "32x32" in op else 4
        elif self.cls == "valu":
            add(ops[0], True)
            nsrc = 1
            if self.base in ("v_add_co_u32", "v_sub_co_u32", "v_addc_co_u32", "v_mad_u64_u32"):
                add(ops[1], True)
                nsrc = 2
            for o in ops[nsrc:]:
                add(o, False)
            if self.base.startswith(("v_fmac", "v_dot2c", "v_pk_fmac", "v_writelane")):
                add(ops[0], False)
            if self.base.startswith("v_permlane"):
                add(ops[0], False)
                add(ops[1], True)
            if self.dpp:
                add(ops[0], False)
        elif self.cls == "vmem":
            if op.startswith(("buffer_wbl2", "buffer_inv")):
                pass
            elif " lds" in mods:
                for o in ops:
                    add(o, False)
                self.sr.add(124)
            elif "load" in op:
                add(ops[0], True)
                for o in ops[1:]:
                    add(o, False)
            else:
                for o in ops:
                    add(o, False)
                if "atomic" in op and "sc0" in mods:
                    add(ops[0], True)
            self.wide_store = ("store" in op) and op.endswith(("x3", "x4"))
            if self.wide_store:
                idx = 0 if op.startswith("buffer_") else 1
                self.store_data = regs_of(ops[idx])[1]
        elif self.cls == "ds":
            if "read" in op or "rtn" in op or "permute" in op or "swizzle" in op:
                add(ops[0], True)
                for o in ops[1:]:
                    add(o, False)
            else:
                for o in ops:
                    add(o, False)
        else:
            if op.startswith(("s_cmp", "s_cbranch", "s_branch", "s_waitcnt", "s_barrier", "s_nop", "s_sleep", "s_setprio", "s_endpgm", "s_bitcmp")):
                for o in ops:
                    add(o, False)
            else:
                if ops:
                    add(ops[0], True)
                for o in ops[1:]:
                    add(o, False)
                if "saveexec" in op:
                    self.sw.update({126, 127})

    def states(self):
        if self.op == "s_nop":
            return int(self.ops[0], 0) + 1
        return 1


def need(p, c):
    w = 0
    if p.cls == "valu":
        if c.cls == "mfma" and p.vw & c.vr:
            w = max(w, 2)
        if c.cls == "valu":
            if p.trans and not c.trans and p.vw & c.vr:
                w = max(w, 1)
            if c.base in ("v_readfirstlane_b32", "v_readlane_b32") and p.vw & c.vr:
                w = max(w, 1)
            if (c.dpp or c.base.startswith("v_permlane")) and p.vw & c.vr:
                w = max(w, 2)
            if p.sw & c.sr:
                w = max(w, 4 if c.base in ("v_readlane_b32", "v_writelane_b32") else 2)
        if p.base.startswith("v_dot") and p.vw & (c.vr | c.vw):
            same_c = c.base == p.base and len(c.ops) == 4 and regs_of(c.ops[3])[1] == p.vw and not (p.vw & (regs_of(c.ops[1])[1] | regs_of(c.ops[2])[1]))
            if not same_c:
                w = max(w, 3)
        if c.cls == "vmem" and p.sw & c.sr:
            w = max(w, 5)
        if c.cls == "salu" and (p.sw & c.sr) and not c.op.startswith("s_cbranch"):
            w = max(w, 1)
    if p.cls == "mfma":
        big = p.passes == 8
        if c.cls in ("valu", "vmem", "ds") and (p.vw & (c.vr | c.vw)):
            w = max(w, 12 if big else 8)
        if c.cls == "mfma":
            if p.vw & c.abset:
                w = max(w, 12 if big else 8)
            if p.vw & c.cset and not (p.vw == c.cset and p.passes == c.passes):
                w = max(w, 10 if big else 6)
            if p.vw & c.vw and not (p.vw == c.vw and p.passes == c.passes):
                w = max(w, 10 if big else 6)
        if c.cls == "valu" and (p.cset & c.vw):
            w = max(w, 7 if big else 3)
    if p.cls == "salu" and 124 in p.sw and c.cls == "vmem" and 124 in c.sr:
        w = max(w, 1)
    if p.cls == "vmem" and getattr(p, "wide_store", False) and (p.store_data & c.vw):
        w = max(w, 2)
    return w


class Asm:
    def __init__(self):
        self.lines = []
        self.uid = 0

    def __call__(self, text):
        for l in text.split("\n"):
            l = l.strip()
            if l:
                self.lines.append(l)

    def label(self, name):
        self.lines.append(name + ":")

    def newlabel(self, base):
        self.uid += 1
        return f"L_{base}_{self.uid}"


def fix_hazards(lines, verbose=False):
    ins = [Ins(l) for l in lines]
    inserted = []
    changed = True
    while changed:
        changed = False
        labels = {x.label: i for i, x in enumerate(ins) if x.label}
        srcs = {}
        for i, x in enumerate(ins):
            if x.op and (x.op.startswith("s_cbranch") or x.op == "s_branch"):
                srcs.setdefault(labels[x.ops[0]], []).append(i)

        def preds(i):
            out = []
            if i > 0:
                p = ins[i - 1]
                if not (p.op in ("s_branch", "s_endpgm")):
                    out.append(i - 1)
            if ins[i].label:
                out += srcs.get(i, [])
            return out

        for i, c in enumerate(ins):
            if not c.op or c.op == "s_nop":
                continue
            worst = 0
            stack = [(p, 0) for p in preds(i)]
            seen = {}
            while stack:
                j, dist = stack.pop()
                if dist >= 12:
                    continue
                if seen.get(j, 99) <= dist:
                    continue
                seen[j] = dist
                p = ins[j]
                d2 = dist
                if p.op:
                    n = need(p, c)
                    if n > dist:
                        worst = max(worst, n - dist)
                    d2 = dist + p.states()
                for q in preds(j):
                    stack.append((q, d2))
            if worst > 0:
                ins.insert(i, Ins(f"s_nop {worst - 1} ; hz"))
                inserted.append((c.text, worst))
                changed = True
                break
    if verbose:
        for t, w in inserted:
            print("  hazard nop", w, "before", t)
    return [x.text for x in ins]


CLANG = "clang"
OBJDUMP = "llvm-objdump"


def sizes_of(lines):
    body = "\n".join(l for l in lines if not l.startswith((".p2align", ";@")))
    src = '.amdgcn_target "amdgcn-amd-amdhsa--gfx950"\n.text\nstart_:\n' + body + "\n"
    d = tempfile.mkdtemp()
    open(d + "/a.s", "w").write(src)
    r = subprocess.run([CLANG, "-x", "assembler", "-target", "amdgcn-amd-amdhsa", "-mcpu=gfx950", "-c", d + "/a.s", "-o", d + "/a.o"], capture_output=True, text=True)
    assert r.returncode == 0, r.stderr
    o = subprocess.run([OBJDUMP, "-d", "--mcpu=gfx950", d + "/a.o"], capture_output=True, text=True).stdout
    sz = []
    for l in o.splitlines():
        m = re.search(r"//\s*([0-9A-F]{12}):((?: [0-9A-F]{8})+)", l)
        if m:
            sz.append(4 * len(m.group(2).split()))
    out = []
    k = 0
    for l in lines:
        x = Ins(l)
        if x.op:
            out.append(sz[k])
            k += 1
        else:
            out.append(0)
    assert k == len(sz), (k, len(sz))
    return out


PROMOTABLE = ("v_exp_f32", "v_rcp_f32", "v_mov_b32", "v_add_f32", "v_mul_f32", "v_max_f32", "v_sub_f32", "v_add_u32", "v_lshlrev_b32", "v_and_b32", "v_rsq_f32", "v_or_b32", "v_xor_b32", "v_lshrrev_b32")


def fix_align(lines, verbose=False):
    sz = sizes_of(lines)
    lines = list(lines)
    hot = False
    par = 0
    cand = None
    bad = 0
    for i, l in enumerate(lines):
        if l.startswith(";@hot"):
            hot = True
            par = 0
            cand = None
            continue
        if l.startswith(";@endhot"):
            hot = False
            continue
        if not hot or sz[i] == 0:
            continue
        if sz[i] == 8:
            if par:
                if cand is not None:
                    op = lines[cand].split(None, 1)
                    lines[cand] = re.sub(r"_e32$", "", op[0]) + "_e64 " + op[1]
                    par = 0
                else:
                    bad += 1
                    if verbose:
                        print("  misaligned 8B:", l)
            cand = None
        else:
            par ^= 1
            x = Ins(l)
            if x.base in PROMOTABLE and not x.dpp:
                cand = i
    if verbose:
        print("misaligned left:", bad)
    return lines
```

```python
import sys, os, struct, math
sys.path.insert(0, os.path.dirname(os.path.abspath(__file__)))
from asmlib import Asm, fix_hazards, fix_align

NAME = "gated_mix__mha_block__mixer_token_mlp__prompt"
OPT = dict(hold=1, npre=2, qb=14, rot=1, rot2=1, ntx="", ntw="", ntw1="nt", ntw2="nt", ntwo="", g2la=2, g2spread=1, osleep=1, aprio=1, gprio_v=3, gprio_m=0, stamps=0, pattern="even", spin=1 << 16, force_fb=0)
for a in sys.argv[2:]:
    k, v = a.split("=")
    OPT[k] = int(v) if v.lstrip("-").isdigit() else v


def f2u(x):
    return struct.unpack("<I", struct.pack("<f", x))[0]


WS_E = 0
FLH = 0x1000
FLQ = 0x2000
FLU = 0x4000
FLP = 0x8000
FLO = 0x18000
GATE = 0x38000
DBGT = 0x40000
QK = 0x90000
assert DBGT + 2048 * 64 <= QK
VV = QK + 320 * 16384
VCT = 64 * 8704
HT = VV + 5 * VCT
UU = HT + 256 * 10240
O1 = UU + 96 * 2 * 640 * 16
O2 = O1 + 32 * 2 * 2048 * 16
PB = O2 + 32 * 2048 * 8
WS_END = PB + 60 * 16 * 12288

RINGA = 0
RINGB = 65536
XCH = 131072
CNT = XCH + 4 * 7168
LDS_SIZE = CNT + 64
C_R, C_G2, C_G3, C_G4, C_O0, C_O1, C_TD = [4 * i for i in range(7)]

sX, sWQ, sWS = "s[4:7]", "s[8:11]", "s[12:15]"
sW1, sW2, sWO, sB1, sB2, sGW, sOUT, sCODE = ["s[%d:%d]" % (i, i + 3) for i in range(40, 72, 4)]
sNONCE = "s[74:75]"
sW8, sW, sXCD, sI = "s76", "s77", "s78", "s79"
sTT, sCT = "s80", "s81"
sFT, sDT, sKQ = "s36", "s37", "s22"
STAMP0 = 86

a = Asm()


def v(i, n=1):
    return f"v{i}" if n == 1 else f"v[{i}:{i + n - 1}]"


def srd(dst, lo, nbytes):
    d = int(dst[2:dst.index(":")])
    a(f"s_mov_b32 s{d}, s{lo}\ns_mov_b32 s{d + 1}, s{lo + 1}\ns_mov_b32 s{d + 2}, {nbytes}\ns_mov_b32 s{d + 3}, 0x20000")


ROLE = ["T"]


def stamp(i, diag=False):
    if OPT.get("diag") and ROLE[0] == "T" and not diag and i > 0:
        return
    if diag and not OPT.get("diag"):
        return
    if OPT["stamps"]:
        a(f"s_memrealtime s[100:101]\ns_waitcnt lgkmcnt(0)\ns_mov_b32 s{STAMP0 + i}, s100")


def cstamp(i):
    if OPT["stamps"] and not OPT.get("diag"):
        a(f"s_memtime s[100:101]\ns_waitcnt lgkmcnt(0)\ns_mov_b32 s{STAMP0 + i}, s100")


def dump_stamps():
    if OPT["stamps"]:
        a(f"s_lshl_b32 s3, s2, 3\ns_add_u32 s3, s3, {sW8}\ns_lshl_b32 s3, s3, 6\ns_add_u32 s3, s3, {DBGT}")
        a("v_mov_b32 v2, 0")
        for q in range(3):
            for r in range(4):
                a(f"v_mov_b32 v{4 + r}, s{STAMP0 + 4 * q + r}")
            a(f"buffer_store_dwordx4 v[4:7], v2, {sWS}, s3 offen offset:{16 * q}")
            a("s_nop 1")


def lds_arrive(cnt, vC, vOne):
    a(f"s_mov_b64 exec, 1\nds_add_u32 {v(vC)}, {v(vOne)} offset:{cnt}\ns_mov_b64 exec, -1")


def lds_wait(cnt, n, vC, vT, sleep=1):
    L, Ld = a.newlabel("lw"), a.newlabel("lwd")
    a(f"s_mov_b32 s82, {OPT['spin'] * 4}")
    a.label(L)
    a(f"ds_read_b32 {v(vT)}, {v(vC)} offset:{cnt}\ns_waitcnt lgkmcnt(0)\nv_readfirstlane_b32 s3, {v(vT)}")
    a(f"s_cmp_ge_u32 s3, {n}\ns_cbranch_scc1 {Ld}")
    if sleep:
        a(f"s_sleep {sleep}")
    a(f"s_sub_u32 s82, s82, 1\ns_cmp_lg_u32 s82, 0\ns_cbranch_scc1 {L}")
    a.label(Ld)


def poll(vA, vT, sleep=2):
    L, Ld = a.newlabel("po"), a.newlabel("pod")
    a(f"s_mov_b32 s82, {OPT['spin']}")
    a.label(L)
    a(f"buffer_load_dwordx2 {v(vT, 2)}, {v(vA)}, {sWS}, 0 offen sc1\ns_waitcnt vmcnt(0)")
    a(f"v_cmp_ne_u64 vcc, {sNONCE}, {v(vT, 2)}\ns_cbranch_vccz {Ld}")
    if sleep:
        a(f"s_sleep {sleep}")
    a(f"s_sub_u32 s82, s82, 1\ns_cmp_lg_u32 s82, 0\ns_cbranch_scc1 {L}")
    a.label(Ld)


def set_flag(soff, vT):
    a(f"v_mov_b32 {v(vT)}, s74\nv_mov_b32 {v(vT + 1)}, s75\nv_mov_b32 {v(vT + 2)}, 0")
    a(f"s_mov_b64 exec, 1\nbuffer_store_dwordx2 {v(vT, 2)}, {v(vT + 2)}, {sWS}, {soff} offen sc1\ns_mov_b64 exec, -1")


def mfma32(d, x, y, c=None):
    a(f"v_mfma_f32_32x32x16_bf16 {v(d, 16)}, {v(x, 4)}, {v(y, 4)}, {v(d, 16) if c is None else c}")


def mfma32k8(d, x, y, c=None):
    a(f"v_mfma_f32_32x32x8_bf16 {v(d, 16)}, {v(x, 2)}, {v(y, 2)}, {v(d, 16) if c is None else c}")


def mfma16(d, x, y, c=None):
    a(f"v_mfma_f32_16x16x32_bf16 {v(d, 4)}, {v(x, 4)}, {v(y, 4)}, {v(d, 4) if c is None else c}")


vL = 1
vCN = 254
vONE = 255


LNX, LNG = 200, 210
NLP = 10


def build_ws_and_nonce_load():
    srd(sWS, 38, WS_END)
    a(f"s_load_dwordx2 s[72:73], s[38:39], {WS_E}")


def make_nonce():
    a("s_mul_i32 s74, s72, 1664525\ns_add_u32 s74, s74, 1013904223")
    a("s_mul_i32 s75, s73, 22695477\ns_add_u32 s75, s75, 0x3c6ef35f")


def g1_tile():
    a(f"s_mul_i32 s3, {sI}, 52\ns_lshr_b32 s3, s3, 8\ns_mul_i32 {sDT}, s3, 5\ns_sub_u32 {sDT}, {sI}, {sDT}")
    a(f"s_and_b32 {sFT}, {sXCD}, 1\ns_mul_i32 {sFT}, {sFT}, 6\ns_add_u32 {sFT}, {sFT}, s3\ns_lshr_b32 {sKQ}, {sXCD}, 1")


def entry():
    a("s_cmp_ge_u32 s2, 256\ns_cbranch_scc1 L_end")
    a("s_load_dwordx16 s[16:31], s[0:1], 0\ns_load_dwordx8 s[32:39], s[0:1], 64")
    a("s_getpc_b64 s[68:69]")
    a("v_lshrrev_b32 v2, 6, v0\nv_and_b32 v1, 63, v0")
    a(f"s_and_b32 {sXCD}, s2, 7\ns_lshr_b32 {sI}, s2, 3")
    a(f"v_readfirstlane_b32 {sW8}, v2")
    a(f"s_and_b32 s3, {sXCD}, 1\ns_mul_i32 s3, s3, 30\ns_add_u32 s3, s3, {sI}\ns_lshr_b32 {sCT}, s3, 2\ns_and_b32 {sTT}, s3, 3")
    a(f"s_and_b32 s3, {sXCD}, 6\ns_lshl_b32 s3, s3, 1\ns_add_u32 {sTT}, {sTT}, s3")
    a(f"s_and_b32 {sW}, {sW8}, 3\ns_and_b32 s83, {sW8}, 1\ns_lshr_b32 s84, {sW}, 1")
    a(f"s_cmp_ge_u32 {sW8}, 4\ns_cbranch_scc1 L_T")
    a("s_and_b32 s68, s68, 0xffffff00\ns_mov_b32 s70, CODE_BYTES\ns_mov_b32 s71, 0x20000")
    a(f"s_mul_i32 s3, {sI}, {NLP * 128}\nv_lshlrev_b32 v8, 7, v0")
    L = a.newlabel("npf")
    a(f"s_cmp_lg_u32 {sW8}, 0\ns_cbranch_scc1 {L}")
    a(f"s_mov_b64 exec, {hex((1 << NLP) - 1)}\nbuffer_load_dword v253, v8, {sCODE}, s3 offen\ns_mov_b64 exec, -1")
    a.label(L)
    a(f"s_lshl_b32 s3, s2, 2\ns_add_u32 s3, s3, {sW}\ns_mul_i32 s3, s3, 2560")
    a("v_lshrrev_b32 v9, 5, v1\nv_mul_u32_u24 v10, 1280, v9\nv_and_b32 v8, 31, v1")
    a("v_lshlrev_b32 v14, 4, v8\nv_lshlrev_b32 v15, 3, v8\nv_add_u32 v12, v10, v14\nv_add_u32 v13, v10, v15")
    a("s_waitcnt lgkmcnt(0)")
    srd(sX, 16, 2048 * 1280)
    srd(sGW, 32, 1280)
    a(f"buffer_load_dwordx4 {v(LNX, 4)}, v12, {sX}, s3 offen")
    a(f"buffer_load_dwordx4 {v(LNX + 4, 4)}, v12, {sX}, s3 offen offset:512")
    a(f"buffer_load_dwordx2 {v(LNX + 8, 2)}, v13, {sX}, s3 offen offset:1024")
    a(f"buffer_load_dwordx4 {v(LNG, 4)}, v14, {sGW}, 0 offen")
    a(f"buffer_load_dwordx4 {v(LNG + 4, 4)}, v14, {sGW}, 0 offen offset:512")
    a(f"buffer_load_dwordx2 {v(LNG + 8, 2)}, v15, {sGW}, 0 offen offset:1024")
    build_ws_and_nonce_load()
    a("s_branch L_M")


class VM:
    def __init__(self):
        self.log = []

    def op(self, tag, text):
        a(text)
        self.log.append(tag)

    def wait(self, tag, extra=""):
        last = max(i for i, t in enumerate(self.log) if t == tag)
        n = len(self.log) - 1 - last
        assert n < 64
        a(f"s_waitcnt vmcnt({n}){extra}")


FB = max(2, OPT["npre"])


def t_front():
    a.label("L_T")
    vXO, vWO, vHO, vW1 = [2, 3, 4, 5], [6, 7, 8, 9], [10, 11], [12, 13, 14, 15]
    sXO, sWOF, sMA, sMB = "s60", "s61", "s62", "s63"
    a(f"s_lshl_b32 s3, {sTT}, 2\ns_add_u32 s3, s3, {sW}\ns_mul_i32 s3, s3, {32 * 1280}")
    a("v_lshrrev_b32 v16, 3, v1\nv_mul_u32_u24 v16, 1280, v16\nv_add_u32 v16, s3, v16")
    a("v_and_b32 v17, 7, v1\nv_lshrrev_b32 v18, 4, v1\nv_xor_b32 v17, v17, v18")
    a(f"v_lshl_add_u32 {v(vXO[0])}, v17, 4, v16\nv_xor_b32 v19, 64, {v(vXO[0])}")
    a(f"v_add_u32 {v(vXO[1])}, {8 * 1280 - 1024}, v19\nv_add_u32 {v(vXO[2])}, {2 * (8 * 1280 - 1024)}, {v(vXO[0])}\nv_add_u32 {v(vXO[3])}, {3 * (8 * 1280 - 1024)}, v19")
    a(f"s_mul_i32 s3, {sW}, {16 * 3840}\ns_lshl_b32 s85, {sCT}, 8\ns_add_u32 s3, s3, s85")
    a("v_and_b32 v17, 15, v1\nv_lshlrev_b32 v19, 2, v18\nv_xor_b32 v17, v17, v19\nv_lshlrev_b32 v17, 4, v17")
    a(f"v_mul_u32_u24 v16, 3840, v18\nv_add3_u32 {v(vWO[0])}, v16, v17, s3")
    for j in range(1, 4):
        a(f"v_add_u32 {v(vWO[j])}, {j * (4 * 3840 - 1024)}, {v(vWO[0])}")
    a(f"s_lshl_b32 {sMA}, {sW}, 12\ns_add_u32 {sMB}, {sMA}, {RINGB}")
    if OPT["rot"]:
        a(f"s_and_b32 s3, {sTT}, 3\ns_mul_i32 s3, s3, 5\ns_add_u32 s3, s3, 1\ns_lshr_b32 s3, s3, 1")
        a(f"s_add_u32 s3, s3, {sCT}")
        if OPT["rot"] == 1:
            a(f"s_lshr_b32 s85, {sXCD}, 1\ns_add_u32 s3, s3, s85")
        a("s_mul_i32 s85, s3, 26\ns_lshr_b32 s85, s85, 8\ns_mul_i32 s85, s85, 10\ns_sub_u32 s3, s3, s85")
        a(f"s_lshl_b32 {sXO}, s3, 7\ns_mul_i32 {sWOF}, s3, {64 * 3840}")
    else:
        a(f"s_mov_b32 {sXO}, 0\ns_mov_b32 {sWOF}, 0")
    a("s_waitcnt lgkmcnt(0)")
    stamp(0)
    srd(sX, 16, 2048 * 1280)
    srd(sWQ, 18, 640 * 3840)
    vm = VM()

    def group(tag, vregs, srdn, soff, mbase, moff, fl):
        a(f"s_add_u32 m0, {mbase}, {moff}")
        for j in range(4):
            vm.op(tag, f"buffer_load_dwordx4 {v(vregs[j])}, {srdn}, {soff} offen offset:{1024 * j} {fl} lds")

    def stage(s):
        slot = 16384 * (s % 4)
        if s < 10:
            group(s, vXO, sX, sXO, sMA, slot, OPT["ntx"])
            a(f"s_add_u32 {sXO}, {sXO}, 128")
            group(s, vWO, sWQ, sWOF, sMB, slot, OPT["ntw"])
            a(f"s_add_u32 {sWOF}, {sWOF}, {64 * 3840}\ns_cmp_eq_u32 {sXO}, 1280")
            a(f"s_cselect_b32 {sXO}, 0, {sXO}\ns_cselect_b32 {sWOF}, 0, {sWOF}")
            return
        if s == 10:
            if OPT["rot2"]:
                a(f"s_mul_i32 s3, {sDT}, 3\ns_add_u32 s3, s3, 1\ns_lshr_b32 s3, s3, 1\ns_add_u32 s3, s3, {sFT}\ns_and_b32 s3, s3, 7")
                a(f"s_mul_i32 {sXO}, s3, {8 * 10240}\ns_mul_i32 {sWOF}, s3, {64 * 3072}")
            else:
                a(f"s_mov_b32 {sXO}, 0\ns_mov_b32 {sWOF}, 0")
        group(s, vW1, sW1, sWOF, sMB, slot, OPT["ntw1"])
        a(f"s_add_u32 {sWOF}, {sWOF}, {64 * 3072}")
        if s == 10:
            vm.wait("hf")
            L = a.newlabel("hok")
            a(f"v_cmp_ne_u64 vcc, {sNONCE}, v[28:29]\ns_cbranch_vccz {L}")
            poll(30, 28, sleep=1)
            a.label(L)
        group(s, [vHO[0], vHO[0], vHO[1], vHO[1]], sWS, sXO, sMA, slot, "sc1")
        a(f"s_add_u32 {sXO}, {sXO}, {8 * 10240}\ns_cmp_eq_u32 {sXO}, {64 * 10240}")
        a(f"s_cselect_b32 {sXO}, 0, {sXO}\ns_cselect_b32 {sWOF}, 0, {sWOF}")

    def setup2():
        a("v_bfe_u32 v16, v1, 2, 2\nv_mul_u32_u24 v16, 1280, v16\nv_lshl_add_u32 v16, v18, 5, v16")
        a(f"v_and_b32 v19, 3, v1\nv_lshl_add_u32 v16, v19, 3, v16\ns_lshl_b32 s3, {sW}, 7\ns_add_u32 s3, s3, {XCH}\nv_add_u32 v16, s3, v16")
        a(f"v_lshlrev_b32 v19, 4, v1\ns_mul_i32 s85, s2, 10240\ns_lshl_b32 s3, {sW}, 10\ns_add_u32 s85, s85, s3\ns_add_u32 s85, s85, {HT}")
        a(f"v_mov_b32 {v(vCN)}, {CNT}\nv_mov_b32 {v(vONE)}, 1")
        a("s_waitcnt lgkmcnt(0)")
        make_nonce()

    def ln_store():
        for k in range(3):
            a(f"ds_read_b64_tr_b16 {v(192 + 4 * k, 2)}, v16 offset:{512 * k}\nds_read_b64_tr_b16 {v(194 + 4 * k, 2)}, v16 offset:{512 * k + 5120}")
        a(f"s_add_u32 s3, s85, 4096\ns_add_u32 s82, s85, 8192\ns_cmp_lt_u32 {sW}, 2\ns_cselect_b32 s82, s82, 0x80000000")
        for k, so in enumerate(("s85", "s3", "s82")):
            a(f"s_waitcnt lgkmcnt({4 - 2 * k})")
            vm.op("ln", f"buffer_store_dwordx4 {v(192 + 4 * k, 4)}, v19, {sWS}, {so} offen sc1")

    def ln_flag():
        a(f"s_lshl_b32 s85, s2, 4\ns_add_u32 s85, s85, {FLH}\ns_cmp_eq_u32 {sW}, 0\ns_cselect_b32 s85, s85, 0x80000000")
        set_flag("s85", 20)
        vm.log.append("lf")

    def setup3():
        g1_tile()
        srd(sW1, 24, 2048 * 3072)
        a(f"s_lshl_b32 s3, {sKQ}, 5\ns_add_u32 s3, s3, {sW}\ns_mul_i32 s3, s3, {16 * 3072}\ns_lshl_b32 s85, {sFT}, 8\ns_add_u32 s3, s3, s85")
        a(f"v_mul_u32_u24 v16, 3072, v18\nv_add3_u32 {v(vW1[0])}, v16, v17, s3")
        for j in range(1, 4):
            a(f"v_add_u32 {v(vW1[j])}, {j * (4 * 3072 - 1024)}, {v(vW1[0])}")
        a(f"s_lshl_b32 s3, {sKQ}, 5\ns_add_u32 s3, s3, {sW}\ns_mul_i32 s3, s3, 20480\ns_lshl_b32 s85, {sDT}, 11\ns_add_u32 s3, s3, s85\ns_add_u32 s3, s3, {HT}")
        a(f"v_add_u32 {v(vHO[0])}, s3, v19\nv_add_u32 {v(vHO[1])}, {10240 - 2048}, {v(vHO[0])}")
        a(f"s_lshl_b32 s3, {sKQ}, 10\ns_add_u32 s3, s3, {FLH}\nv_add_u32 v30, s3, v19")

    L = a.newlabel("nost0")
    a(f"s_cmp_ge_u32 {sI}, 30\ns_cbranch_scc1 {L}")
    stage(0)
    a.label(L)
    build_ws_and_nonce_load()
    a("v_lshlrev_b32 v19, 4, v1")
    setup3()
    att_setup_a()
    att_setup_b()
    setup2()
    a(f"s_cmp_ge_u32 {sI}, 30\ns_cbranch_scc1 L_T_idle")
    stage(1)
    vm.wait(0)
    a("s_barrier")
    stamp(1)
    if OPT.get("diag") == 1:
        stamp(1, True)
    ln_store()
    sched = {s: [s + 2] for s in range(0, 16)}
    if OPT["hold"]:
        sched[9] = []
        sched[10] = [11, 12]
    for x in sched[0]:
        stage(x)
    for s in range(1, 18):
        vm.wait(s)
        a("s_barrier")
        if 1 <= s - OPT.get("diag", 0) + 2 <= 11:
            stamp(s - OPT.get("diag", 0) + 2, True)
        if s == FB:
            ln_flag()
        if s == 10:
            stamp(2)
        for x in sched.get(s, []):
            if x == 9:
                vm.op("hf", f"buffer_load_dwordx2 v[28:29], v30, {sWS}, 0 offen sc1")
            stage(x)
    stamp(3)
    a("s_branch L_T_att")
    a.label("L_T_idle")
    a("s_barrier")
    ln_store()
    a("s_waitcnt vmcnt(0)\ns_barrier")
    ln_flag()


ACC = 64
ACC2 = 128
FX = lambda buf, tb: 32 + 16 * buf + 4 * tb
FW = lambda buf, cb: 40 + 16 * buf + 4 * cb
vXA = [2, 3, 4, 5]
vWA = [6, 7]
vHA = [24, 25]
vWB = [26, 27]


def tile_reads(n, mode):
    st, ks, buf = n // 4, n % 4, n & 1
    slot = (st + (10 if mode == "g1" else 0)) % 4
    wa = vWB if mode == "g1" else vWA
    r = []
    for cb in range(2):
        for p in range(2):
            r.append(f"ds_read_b64_tr_b16 {v(FW(buf, cb) + 2 * p, 2)}, {v(wa[cb])} offset:{slot * 16384 + (16 * ks + 4 * p) * 256}")
    if mode == "g1":
        x = [f"ds_read_b128 {v(FX(buf, tb), 4)}, {v(vHA[tb])} offset:{slot * 16384 + ks * 4096}" for tb in range(2)]
    else:
        x = [f"ds_read_b128 {v(FX(buf, tb), 4)}, {v(vXA[ks])} offset:{slot * 16384 + tb * 4096}" for tb in range(2)]
    return [r[0], r[1], x[0], x[1], r[2], r[3]]


def tile_loop(mode):
    N = 32 if mode == "g1" else 40
    acc = ACC2 if mode == "g1" else ACC
    for r in tile_reads(0, mode):
        a(r)
    for n in range(N):
        buf = n & 1
        rd = tile_reads(n + 1, mode) if n < N - 1 else []
        a("s_waitcnt lgkmcnt(0)")
        for q, (cb, tb) in enumerate([(0, 0), (0, 1), (1, 1), (1, 0)]):
            d = acc + 16 * (2 * cb + tb)
            c = "0" if (n == 0 and not (mode == "g1" and q == 0)) else None
            if mode == "v":
                mfma32(d, FX(buf, tb), FW(buf, cb), c)
            else:
                mfma32(d, FW(buf, cb), FX(buf, tb), c)
            if q == 0 and n % 4 == 3 and n < N - 1:
                bn = n // 4 + 1 + (10 if mode == "g1" else 0)
                if bn == FB or bn == OPT["qb"]:
                    a("s_waitcnt vmcnt(0)")
                a("s_barrier")
            if q == 0 and n == N - 1 and mode == "g1":
                lds_arrive(C_R, vCN, vONE)
            if q < 2:
                for r in rd[3 * q:3 * q + 3]:
                    a(r)
            if q == 2 and mode == "g1" and n % 4 == 3 and n // 4 + 11 == OPT["qb"]:
                L = a.newlabel("nq")
                a(f"s_cmp_lg_u32 {sW}, 0\ns_cbranch_scc1 {L}")
                a(f"s_mov_b64 exec, 1\nbuffer_store_dwordx2 v[28:29], v30, {sWS}, 0 offen sc1\ns_mov_b64 exec, -1")
                a.label(L)


def half_sum(xs, ts):
    for rot in (8, 4, 2, 1):
        for x in xs:
            a(f"v_add_f32_dpp {v(x)}, {v(x)}, {v(x)} row_ror:{rot} row_mask:0xf bank_mask:0xf")
    for x, t in zip(xs, ts):
        a(f"v_mov_b32 {v(t)}, {v(x)}")
    for x, t in zip(xs, ts):
        a(f"v_permlane16_swap_b32 {v(t)}, {v(x)}")
    for x, t in zip(xs, ts):
        a(f"v_add_f32 {v(x)}, {v(x)}, {v(t)}")


def m_front():
    a.label("L_M")
    stamp(0)
    a(f"v_mov_b32 {v(vCN)}, {CNT}\nv_mov_b32 {v(vONE)}, 1")
    a(f"v_mov_b32 v16, 0\nv_lshl_add_u32 v17, v1, 2, {v(vCN)}")
    L = a.newlabel("nz")
    a(f"s_cmp_lg_u32 {sW8}, 0\ns_cbranch_scc1 {L}")
    a("s_mov_b64 exec, 0xffff\nds_write_b32 v17, v16\ns_mov_b64 exec, -1")
    a.label(L)
    g1_tile()
    srd(sB1, 26, 3072)
    srd(sW2, 28, 1536 * 4096)
    srd(sWO, 20, 640 * 1280)
    srd(sB2, 30, 4096)
    srd(sOUT, 34, 2048 * 1280)
    a(f"s_lshr_b32 s26, {sKQ}, 1\ns_and_b32 s27, {sKQ}, 1")
    a(f"s_lshl_b32 s24, {sFT}, 1\ns_add_u32 s24, s24, s83\ns_lshl_b32 s24, s24, 1\ns_add_u32 s24, s24, s26")
    a(f"s_lshl_b32 s25, {sDT}, 1\ns_add_u32 s25, s25, s84\ns_lshl_b32 s25, s25, 1\ns_add_u32 s25, s25, s27")
    a("v_lshlrev_b32 v16, 30, v9\nv_lshl_add_u32 v16, v8, 1, v16\ns_lshl_b32 s3, s24, 6")
    a(f"buffer_load_ushort v20, v16, {sB1}, s3 offen\nv_mov_b32 v21, 0\nv_mov_b32 v22, 0x3f80\nv_mov_b32 v23, 0")
    a(f"s_mul_i32 s3, {sW}, 2560\ns_add_u32 s3, s3, {XCH}\nv_add_u32 v12, s3, v12\nv_add_u32 v13, s3, v13")
    a("v_bfe_u32 v10, v1, 1, 3\nv_xor_b32 v10, v10, v9\nv_lshlrev_b32 v10, 4, v10")
    a("s_lshl_b32 s3, s84, 13\nv_lshl_add_u32 v11, v8, 7, s3")
    for ks in range(4):
        a(f"v_xor_b32 v16, {32 * ks}, v10\nv_add_u32 {v(vXA[ks])}, v11, v16")
    a("v_bfe_u32 v10, v1, 2, 2")
    a("v_lshl_add_u32 v11, v9, 3, v10\nv_lshlrev_b32 v11, 8, v11")
    a("v_bfe_u32 v16, v1, 4, 1\nv_lshl_add_u32 v11, v16, 5, v11")
    a("v_and_b32 v16, 3, v1\nv_lshl_add_u32 v11, v16, 3, v11")
    a(f"v_add_u32 v11, {RINGB}, v11")
    a(f"s_lshl_b32 s3, s83, 1\nv_xor_b32 v16, s3, v10\nv_lshl_add_u32 {v(vWA[0])}, v16, 6, v11\nv_xor_b32 {v(vWA[1])}, 64, {v(vWA[0])}")
    a(f"s_lshl_b32 s3, s26, 6\nv_xor_b32 {v(vWB[0])}, s3, {v(vWA[0])}\nv_xor_b32 {v(vWB[1])}, s3, {v(vWA[1])}")
    a(f"s_lshl_b32 s3, s84, 1\ns_add_u32 s3, s3, s27\ns_lshl_b32 s3, s3, 9\nv_lshlrev_b32 v16, 11, v9\nv_add3_u32 {v(vHA[0])}, v16, v14, s3")
    a(f"v_xor_b32 {v(vHA[1])}, 512, {v(vHA[0])}")
    a(f"s_lshl_b32 s3, {sCT}, 4\ns_add_u32 s3, s3, {sTT}\ns_lshl_b32 s3, s3, 4\ns_add_u32 s3, s3, {FLQ}\nv_mov_b32 v30, s3")
    a(f"s_mov_b32 s28, 0x3f803f80\nv_mov_b32 v16, 0\nv_mov_b32 v17, 0\nv_mov_b32 v18, 0\nv_mov_b32 v19, 0")
    a("s_waitcnt lgkmcnt(0)")
    make_nonce()
    a("v_mov_b32 v28, s74\nv_mov_b32 v29, s75")
    X = 160
    a("s_waitcnt vmcnt(4)")
    stamp(1)
    for r in range(10):
        a(f"v_dot2_f32_bf16 v16, {v(LNX + r)}, s28, v16")
    for r in range(10):
        a(f"v_lshlrev_b32 {v(X + 2 * r)}, 16, {v(LNX + r)}\nv_and_b32 {v(X + 2 * r + 1)}, 0xffff0000, {v(LNX + r)}")
    a("s_waitcnt vmcnt(1)")
    for r in range(10):
        a(f"v_dot2_f32_bf16 v17, {v(LNX + r)}, {v(LNG + r)}, v17")
    half_sum([16, 17], [10, 11])
    a(f"v_mul_f32 v16, {hex(f2u(-1.0 / 640))}, v16")
    a(f"v_mul_f32 v17, {hex(f2u(-math.log2(math.e)))}, v17\nv_exp_f32 v31, v17")
    for r in range(0, 20, 2):
        a(f"v_pk_add_f32 {v(X + r, 2)}, {v(X + r, 2)}, v[16:17] op_sel_hi:[1,0]")
    for r in range(0, 20, 2):
        a(f"v_pk_fma_f32 v[18:19], {v(X + r, 2)}, {v(X + r, 2)}, v[18:19]")
    a("v_add_f32 v31, 1.0, v31\nv_add_f32 v18, v18, v19\nv_rcp_f32 v31, v31")
    half_sum([18], [10])
    a(f"v_mov_b32 v16, {hex(f2u(1e-5))}\nv_fmac_f32 v16, {hex(f2u(1.0 / 640))}, v18\nv_rsq_f32 v16, v16")
    a(f"s_lshl_b32 s3, s2, 7\ns_lshl_b32 s85, {sW}, 3\ns_add_u32 s85, s85, s3\ns_add_u32 s85, s85, {GATE}\nv_lshlrev_b32 v10, 2, v9")
    for r in range(0, 20, 2):
        a(f"v_pk_mul_f32 {v(X + r, 2)}, {v(X + r, 2)}, v[16:17] op_sel_hi:[1,0]")
    for r in range(10):
        a(f"v_cvt_pk_bf16_f32 {v(LNX + r)}, {v(X + 2 * r)}, {v(X + 2 * r + 1)}")
    a(f"ds_write_b128 v12, {v(LNX, 4)}\nds_write_b128 v12, {v(LNX + 4, 4)} offset:512\nds_write_b64 v13, {v(LNX + 8, 2)} offset:1024")
    a("s_mov_b32 exec_lo, 1\ns_mov_b32 exec_hi, 1")
    a(f"buffer_store_dword v31, v10, {sWS}, s85 offen sc1\ns_mov_b64 exec, -1")
    a("s_waitcnt lgkmcnt(0)")
    stamp(2)
    a("s_barrier")
    a(f"s_cmp_ge_u32 {sI}, 30\ns_cbranch_scc1 L_M_idle")
    a(f"s_cmp_ge_u32 {sCT}, 10\ns_cbranch_scc1 L_M_v")
    tile_loop("qk")
    stamp(3)
    a("v_lshl_add_u32 v10, v9, 14, v15")
    a(f"s_lshl_b32 s3, {sCT}, 1\ns_add_u32 s3, s3, s83\ns_lshl_b32 s3, s3, 18")
    a(f"s_lshl_b32 s85, {sTT}, 1\ns_add_u32 s85, s85, s84\ns_lshl_b32 s85, s85, 9\ns_add_u32 s85, s85, s3\ns_add_u32 s85, s85, {QK}")
    L = a.newlabel("noscale")
    a(f"s_cmp_ge_u32 {sCT}, 5\ns_cbranch_scc1 {L}")
    c = f2u(math.log2(math.e) / math.sqrt(20.0))
    a(f"s_mov_b32 s72, {c}\ns_mov_b32 s73, {c}")
    for cb, tb in [(0, 0), (0, 1), (1, 1), (1, 0)]:
        d = ACC + 16 * (2 * cb + tb)
        for r in range(0, 16, 2):
            a(f"v_pk_mul_f32 {v(d + r, 2)}, {v(d + r, 2)}, s[72:73]")
    a.label(L)
    for cb in range(2):
        for g in range(4):
            for tb in range(2):
                d = ACC + 16 * (2 * cb + tb) + 4 * g
                a(f"v_cvt_pk_bf16_f32 {v(d)}, {v(d)}, {v(d + 1)}\nv_cvt_pk_bf16_f32 {v(d + 1)}, {v(d + 2)}, {v(d + 3)}")
                a(f"buffer_store_dwordx2 {v(d, 2)}, v10, {sWS}, s85 offen offset:{256 * tb} sc1")
            a("s_add_u32 s85, s85, 32768")
    a("s_branch L_M_g1")
    a.label("L_M_v")
    tile_loop("v")
    stamp(3)
    a("v_mul_u32_u24 v10, 4352, v9\ns_lshl_b32 s3, s83, 10\nv_add3_u32 v10, v10, v14, s3")
    a(f"s_lshl_b32 s85, {sCT}, 5\ns_lshl_b32 s3, {sTT}, 1\ns_add_u32 s85, s85, s3\ns_add_u32 s85, s85, s84")
    a(f"s_mul_i32 s85, s85, {2 * 8704}\ns_add_u32 s85, s85, {VV - 10 * VCT}\ns_add_u32 s72, s85, 8704")
    for cb, tb in [(0, 0), (0, 1), (1, 1), (1, 0)]:
        for st in range(2):
            d = ACC + 16 * (2 * cb + tb) + 8 * st
            for r in range(4):
                a(f"v_cvt_pk_bf16_f32 {v(d + r)}, {v(d + 2 * r)}, {v(d + 2 * r + 1)}")
            a(f"buffer_store_dwordx4 {v(d, 4)}, v10, {sWS}, {'s72' if tb else 's85'} offen offset:{2176 * st + 512 * cb} sc1")
    a(f"s_cmp_lg_u32 s83, 0\ns_cbranch_scc1 L_M_g1")
    a("v_lshrrev_b32 v11, 3, v1\nv_mul_u32_u24 v11, 2176, v11\nv_and_b32 v12, 7, v1\nv_lshl_add_u32 v11, v12, 4, v11")
    for r in range(4):
        a(f"v_mov_b32 v{16 + r}, 0x3f803f80")
    a(f"buffer_store_dwordx4 v[16:19], v11, {sWS}, s85 offen offset:2048 sc1")
    a.label("L_M_g1")
    mfma32k8(ACC2, 20, 22, "0")
    stamp(4)
    a("s_barrier")
    tile_loop("g1")
    stamp(5)
    a(f"s_mul_i32 s16, {sFT}, 5\ns_add_u32 s16, s16, {sDT}\ns_lshl_b32 s16, s16, 2\nv_lshlrev_b32 v10, 4, v1")
    for k in (1, 3, 2):
        a(f"s_xor_b32 s3, {sKQ}, {k}\ns_add_u32 s3, s3, s16\ns_lshl_b32 s3, s3, 2\ns_add_u32 s3, s3, {sW}\ns_mul_i32 s3, s3, 12288\ns_add_u32 s3, s3, {PB + 4096 * (k - 1)}")
        for q in range(4):
            a(f"buffer_store_dwordx4 {v(ACC2 + 16 * k + 4 * q, 4)}, v10, {sWS}, s3 offen offset:{1024 * q} sc1")
    a(f"s_add_u32 s17, s16, {sKQ}\ns_lshl_b32 s17, s17, 2\ns_add_u32 s17, s17, {sW}")
    a(f"s_lshl_b32 s85, s17, 6\ns_add_u32 s85, s85, {FLP}")
    a(f"s_lshl_b32 s3, s16, 2\ns_add_u32 s3, s3, {sW}\ns_lshl_b32 s3, s3, 6\ns_add_u32 s3, s3, {FLP}")
    a(f"s_setprio {OPT['gprio_v']}")
    a("v_and_b32 v11, 3, v1\nv_lshl_add_u32 v11, v11, 8, s3")
    a("s_waitcnt vmcnt(0)")
    set_flag("s85", 16)
    poll(11, 12, sleep=4)
    a(f"s_setprio {OPT['gprio_m']}")
    a(f"s_mul_i32 s3, s17, 12288\ns_add_u32 s3, s3, {PB}")
    for k in (1, 2, 3):
        for q in range(4):
            a(f"buffer_load_dwordx4 {v(ACC2 + 16 * k + 4 * q, 4)}, v10, {sWS}, s3 offen offset:{1024 * q} sc1")
        a("s_add_u32 s3, s3, 4096")
    a(f"s_waitcnt vmcnt(0)\ns_setprio {OPT['gprio_v']}")
    A0, T0 = ACC2, ACC2 + 16
    for k in (1, 2, 3):
        for r in range(0, 16, 2):
            a(f"v_pk_add_f32 {v(A0 + r, 2)}, {v(A0 + r, 2)}, {v(A0 + 16 * k + r, 2)}")
    c1 = -2.0 * math.sqrt(2.0 / math.pi) * math.log2(math.e)
    c2 = c1 * 0.044715
    a(f"s_mov_b32 s26, {hex(f2u(c2))}\ns_mov_b32 s27, {hex(f2u(c2))}\nv_mov_b32 v16, {hex(f2u(c1))}\nv_mov_b32 v17, {hex(f2u(c1))}")
    for r in range(0, 16, 2):
        a(f"v_pk_mul_f32 {v(T0 + r, 2)}, {v(A0 + r, 2)}, {v(A0 + r, 2)}")
    for r in range(0, 16, 2):
        a(f"v_pk_fma_f32 {v(T0 + r, 2)}, {v(T0 + r, 2)}, s[26:27], v[16:17]")
    for r in range(0, 16, 2):
        a(f"v_pk_mul_f32 {v(T0 + r, 2)}, {v(T0 + r, 2)}, {v(A0 + r, 2)}")
    for r in range(16):
        a(f"v_exp_f32 {v(T0 + r)}, {v(T0 + r)}")
    for r in range(0, 16, 2):
        a(f"v_pk_add_f32 {v(T0 + r, 2)}, {v(T0 + r, 2)}, 1.0 op_sel_hi:[1,0]")
    for r in range(16):
        a(f"v_rcp_f32 {v(T0 + r)}, {v(T0 + r)}")
    for r in range(0, 16, 2):
        a(f"v_pk_mul_f32 {v(A0 + r, 2)}, {v(A0 + r, 2)}, {v(T0 + r, 2)}")
    for r in range(8):
        a(f"v_cvt_pk_bf16_f32 {v(A0 + r)}, {v(A0 + 2 * r)}, {v(A0 + 2 * r + 1)}")
    a("v_mul_u32_u24 v10, 10240, v9\nv_add_u32 v10, v10, v14")
    a(f"s_mul_i32 s85, s24, 40960\ns_lshl_b32 s3, s25, 9\ns_add_u32 s85, s85, s3\ns_add_u32 s85, s85, {UU}\ns_add_u32 s3, s85, 20480")
    a(f"buffer_store_dwordx4 {v(A0, 4)}, v10, {sWS}, s85 offen sc1")
    a(f"buffer_store_dwordx4 {v(A0 + 4, 4)}, v10, {sWS}, s3 offen sc1")
    a(f"s_mul_i32 s85, s25, 48\ns_add_u32 s85, s85, s24\ns_lshl_b32 s85, s85, 4\ns_add_u32 s85, s85, {FLU}")
    a("s_waitcnt vmcnt(0)")
    set_flag("s85", 16)
    lds_wait(C_R, 4, vCN, 16)
    a("s_branch L_G2")
    a.label("L_M_idle")
    a(f"s_waitcnt vmcnt(0)\ns_barrier\ns_setprio {OPT['gprio_v']}")


def dma_group(vregs, srdn, soff, m0base, fl=""):
    a(f"s_mov_b32 m0, {m0base}" if not isinstance(m0base, tuple) else f"s_add_u32 m0, {m0base[0]}, {m0base[1]}")
    for j, r in enumerate(vregs):
        a(f"buffer_load_dwordx4 {v(r)}, {srdn}, {soff} offen offset:{1024 * j} {fl} lds")


OO = lambda c: 128 + 16 * c
SS = lambda b: 192 + 16 * b
PP = 224
Q1 = lambda c: 32 + 6 * c
Q2 = lambda c: 36 + 6 * c
MM = lambda c: 56 + c
vK1, vK2, vV = 60, 61, 62
KB = lambda b: 64 + 14 * b
sK, sKb, sV, sLOOP, sMODE, sH = "s16", "s17", "s18", "s19", "s20", "s21"
sQT = "s34"


def kv_loads(b, koff):
    B = KB(b)
    return [
        f"buffer_load_dwordx2 {v(B, 2)}, {v(vK1)}, {sWS}, {sK} offen offset:{koff} sc1",
        f"buffer_load_dwordx2 {v(B + 2, 2)}, {v(vK1)}, {sWS}, {sKb} offen offset:{koff} sc1",
        f"buffer_load_dword {v(B + 4)}, {v(vK2)}, {sWS}, {sK} offen offset:{koff} sc1",
        f"buffer_load_dwordx4 {v(B + 6, 4)}, {v(vV)}, {sWS}, {sV} offen sc1",
        f"buffer_load_dwordx4 {v(B + 10, 4)}, {v(vV)}, {sWS}, {sV} offen offset:2176 sc1",
    ]


def maxbody():
    T = [192, 208, 224, 8]
    for c in range(4):
        mfma32(T[c], KB(0), Q1(c), "0")
        mfma32k8(T[c], KB(0) + 4, Q2(c))
    for c in range(4):
        for r in range(0, 16, 2):
            a(f"v_max3_f32 {v(MM(c))}, {v(MM(c))}, {v(T[c] + r)}, {v(T[c] + r + 1)}")


def att_slot(tl, extra):
    c, b = tl & 3, (tl >> 2) & 3
    cn, bn = (tl + 1) & 3, ((tl + 1) >> 2) & 3
    cp, bp = (tl - 1) & 3, ((tl - 1) >> 2) & 3
    S, Sn = SS(tl & 1), SS((tl + 1) & 1)
    ms = [
        lambda: mfma32(Sn, KB(bn), Q1(cn), "0"),
        lambda: mfma32k8(Sn, KB(bn) + 4, Q2(cn)),
        lambda: mfma32(OO(cp), KB(bp) + 10, PP + 4),
        lambda: mfma32(OO(c), KB(b) + 6, PP),
    ]
    for q in range(4):
        ms[q]()
        for x in extra.get(q, []):
            a(x)
        for r in range(4):
            a(f"v_exp_f32 {v(S + 4 * q + r)}, {v(S + 4 * q + r)}")
        for r in range(2):
            a(f"v_cvt_pk_bf16_f32 {v(PP + 2 * q + r)}, {v(S + 4 * q + 2 * r)}, {v(S + 4 * q + 2 * r + 1)}")


def att_setup_a():
    a(f"s_lshl_b32 {sH}, {sXCD}, 2\ns_lshr_b32 s3, {sI}, 3\ns_add_u32 {sH}, {sH}, s3")
    a(f"s_and_b32 {sQT}, {sI}, 7\ns_lshl_b32 {sQT}, {sQT}, 1\ns_add_u32 {sQT}, {sQT}, s84")
    a(f"s_mul_i32 s23, {sH}, 20\ns_add_u32 s35, s23, 19\ns_lshr_b32 s33, s23, 7\ns_lshr_b32 s35, s35, 7")
    a("v_bfe_u32 v22, v1, 3, 1\ns_sub_u32 s3, s35, s33\nv_mul_u32_u24 v22, s3, v22\nv_add_u32 v22, s33, v22")
    a("v_lshrrev_b32 v23, 4, v1\nv_add_u32 v23, 1, v23\nv_mul_u32_u24 v23, 5, v23")
    a("v_and_b32 v24, 7, v1\ns_lshl_b32 s3, s83, 3\nv_add_u32 v24, s3, v24")
    a(f"v_cmp_gt_u32 vcc, 32, v1\nv_mov_b32 v25, {sQT}")
    a("v_cndmask_b32 v23, 0, v23, vcc\nv_cndmask_b32 v24, v25, v24, vcc")
    a("v_add_u32 v22, v22, v23\nv_lshl_add_u32 v22, v22, 4, v24\nv_lshlrev_b32 v22, 4, v22")
    a(f"v_add_u32 v31, {FLQ}, v22")
    a("v_and_b32 v20, 31, v1\nv_lshrrev_b32 v21, 5, v1")
    a(f"v_lshlrev_b32 {v(vK1)}, 14, v21\nv_lshl_add_u32 {v(vK1)}, v20, 3, {v(vK1)}")
    a(f"v_lshlrev_b32 {v(vK2)}, 2, v21\nv_lshl_add_u32 {v(vK2)}, v20, 3, {v(vK2)}\nv_add_u32 {v(vK2)}, 0x10000, {v(vK2)}")
    a("v_add_u32 v22, s23, v20\nv_lshrrev_b32 v23, 7, v22\nv_and_b32 v22, 127, v22")
    a("v_cmp_gt_u32 vcc, 20, v20\nv_mov_b32 v24, s33\nv_mov_b32 v25, 128")
    a("v_cndmask_b32 v23, v24, v23, vcc\nv_cndmask_b32 v22, v25, v22, vcc")
    a(f"v_mul_u32_u24 v23, {VCT}, v23\nv_lshl_add_u32 v23, v22, 4, v23\nv_mul_u32_u24 v24, 4352, v21\nv_add_u32 {v(vV)}, v23, v24")
    if OPT.get("zrows", 1):
        a(f"s_mov_b32 s30, {hex(0xeef00000)}\ns_mov_b32 s31, {hex(0xeef00000)}\nv_mov_b32 v24, 0x80000000")
        a(f"v_cndmask_b32 {v(vV)}, {v(vV)}, v24, s[30:31]")
    a(f"s_mul_i32 s26, {sH}, {5 * 16384}\ns_add_u32 s26, s26, {QK}")
    a(f"s_lshl_b32 s3, s83, 13\ns_add_u32 s27, s26, s3\ns_add_u32 s27, s27, {160 * 16384}")
    a(f"s_lshl_b32 s3, {sQT}, 10\ns_add_u32 s26, s26, s3")
    a(f"s_mul_i32 s28, s83, {32 * 8704}\ns_add_u32 s28, s28, {VV}")
    a(f"s_mov_b32 {sMODE}, {OPT['force_fb'] & 1}")


def att_setup_b():
    for b in range(4):
        a(f"v_mov_b32 {v(KB(b) + 5)}, 0x3f803f80")
    for r in range(64):
        a(f"v_mov_b32 {v(OO(0) + r)}, 0")


def t_att():
    a.label("L_T_att")
    a(f"s_setprio {OPT['aprio']}")
    poll(31, 28, sleep=1)
    stamp(4)
    a("s_lshl_b32 s3, s83, 9\ns_add_u32 s29, s26, s3\ns_xor_b32 s3, s3, 512\ns_add_u32 s30, s26, s3")
    a("s_add_u32 s31, s29, 32768\ns_add_u32 s32, s30, 32768")
    for c in range(4):
        s0, s1 = ("s29", "s31") if c < 2 else ("s30", "s32")
        off = 256 * (c & 1)
        a(f"buffer_load_dwordx2 {v(Q1(c), 2)}, {v(vK1)}, {sWS}, {s0} offen offset:{off} sc1")
        a(f"buffer_load_dwordx2 {v(Q1(c) + 2, 2)}, {v(vK1)}, {sWS}, {s1} offen offset:{off} sc1")
        a(f"buffer_load_dword {v(Q2(c))}, {v(vK2)}, {sWS}, {s0} offen offset:{off} sc1")
    a.label("L_att_start")
    for c in range(4):
        a(f"v_mov_b32 {v(Q2(c) + 1)}, 0\nv_mov_b32 {v(MM(c))}, 0xff800000")
    a(f"s_cmp_eq_u32 {sMODE}, 0\ns_cbranch_scc1 L_att_go")
    a(f"s_add_u32 {sK}, s27, {31 * 256}")
    a.label("L_att_max")
    a(f"s_add_u32 {sKb}, {sK}, 32768")
    for x in kv_loads(0, 0)[:3]:
        a(x)
    a("s_waitcnt vmcnt(0)")
    maxbody()
    a(f"s_sub_u32 {sK}, {sK}, 256\ns_cmp_lg_u32 {sK}, s27\ns_cbranch_scc1 L_att_max")
    for r in range(64):
        a(f"v_mov_b32 {v(OO(0) + r)}, 0")
    a.label("L_att_go")
    a(f"s_mov_b32 {sK}, s27\ns_add_u32 {sKb}, s27, 32768\ns_mov_b32 {sV}, s28")
    for b in range(3):
        for x in kv_loads(b, 256 * b):
            a(x)
        a(f"s_add_u32 {sV}, {sV}, 8704")
    for r in range(4):
        a(f"v_mov_b32 {v(KB(3) + 10 + r)}, 0")
    a("s_waitcnt vmcnt(12)")
    stamp(5)
    maxbody()
    a("v_cmp_gt_u32 vcc, 32, v1")
    for c in range(4):
        a(f"v_mov_b32 v{2 + c}, {v(MM(c))}")
    for c in range(4):
        a(f"v_permlane32_swap_b32 v{2 + c}, {v(MM(c))}")
    for c in range(4):
        a(f"v_max_f32 {v(MM(c))}, v{2 + c}, {v(MM(c))}")
    for c in range(4):
        a(f"v_and_b32 v{2 + c}, 0xffff0000, {v(MM(c))}")
    for c in range(4):
        a(f"v_sub_f32 v{8 + c}, {v(MM(c))}, v{2 + c}")
    for c in range(4):
        a(f"v_and_b32 v{12 + c}, 0xffff0000, v{8 + c}")
    for c in range(4):
        a(f"v_sub_f32 v{8 + c}, v{8 + c}, v{12 + c}")
    for c in range(4):
        a(f"v_cvt_pk_bf16_f32 v{2 + c}, -v{2 + c}, -v{12 + c}")
    for c in range(4):
        a(f"v_cvt_pk_bf16_f32 v{8 + c}, -v{8 + c}, 0")
    for c in range(4):
        a(f"v_cndmask_b32 {v(Q2(c) + 1)}, v{8 + c}, v{2 + c}, vcc")
    mfma32(SS(0), KB(0), Q1(0), "0")
    mfma32k8(SS(0), KB(0) + 4, Q2(0))
    for r in range(4):
        a(f"v_mov_b32 {v(PP + 4 + r)}, 0")
    a(f"s_mov_b32 {sLOOP}, 8\ns_waitcnt vmcnt(10)\ns_nop 7")
    stamp(6)
    cstamp(10)
    a(".p2align 6")
    a(";@hot")
    a.label("L_att_loop")
    for tl in range(16):
        j, c = tl >> 2, tl & 3
        ld = kv_loads((j + 3) & 3, 256 * (j + 3))
        if OPT.get("x_noload"):
            ld = ["s_nop 0"] * 5
        extra = {}
        if c == 0:
            extra = {0: [ld[0]], 2: [ld[1]], 3: [ld[2]]}
        elif c == 1:
            extra = {0: [ld[3]], 2: [ld[4]], 3: [f"s_add_u32 {sV}, {sV}, 8704"]}
        elif c == 2:
            extra = {3: ["s_waitcnt vmcnt(10)"]}
            if j == 3:
                extra[0] = [f"s_add_u32 {sK}, {sK}, 1024"]
                extra[2] = [f"s_add_u32 {sKb}, {sKb}, 1024"]
        elif c == 3 and j == 3:
            extra = {0: [f"s_sub_u32 {sLOOP}, {sLOOP}, 1"], 2: [f"s_cmp_lg_u32 {sLOOP}, 0"]}
        att_slot(tl, extra)
    a("s_cbranch_scc1 L_att_loop")
    a(";@endhot")
    mfma32(OO(3), KB(3) + 10, PP + 4)
    stamp(7)
    cstamp(11)
    a("s_waitcnt vmcnt(0)")
    a(f"v_max3_f32 v2, {v(OO(0) + 12)}, {v(OO(1) + 12)}, {v(OO(2) + 12)}\nv_max_f32 v2, v2, {v(OO(3) + 12)}")
    a(f"v_cmp_lt_f32 vcc, {hex(f2u(2.0 ** 30))}, v2\ns_cbranch_vccz L_att_ok")
    if OPT.get("x_noload"):
        a("s_branch L_att_ok")
    a(f"s_cmp_lg_u32 {sMODE}, 0\ns_cbranch_scc1 L_att_ok\ns_mov_b32 {sMODE}, 1\ns_branch L_att_start")
    a.label("L_att_ok")
    lds_arrive(C_TD, vCN, vONE)
    a(f"s_mul_i32 s3, {sW}, 7168\ns_add_u32 s3, s3, {XCH}\nv_lshl_add_u32 v2, v1, 4, s3\nv_lshl_add_u32 v3, v1, 3, s3")
    a(f"s_xor_b32 s29, {sW}, 1\ns_mul_i32 s29, s29, 7168\ns_add_u32 s29, s29, {XCH}\nv_lshl_add_u32 v4, v1, 4, s29\nv_lshl_add_u32 v5, v1, 3, s29")
    for k in range(2):
        a(f"v_mov_b32 {v(OO(2 + k) + 13)}, {v(MM(2 + k))}")
        for q in range(3):
            a(f"ds_write_b128 v2, {v(OO(2 + k) + 4 * q, 4)} offset:{3584 * k + 1024 * q}")
        a(f"ds_write_b64 v3, {v(OO(2 + k) + 12, 2)} offset:{3584 * k + 3072}")
    a(f"s_lshl_b32 s3, s84, 2\nv_add_u32 v6, s3, {v(vCN)}")
    lds_arrive(C_O0, 6, vONE)
    a("v_and_b32 v8, 31, v1\nv_lshrrev_b32 v9, 5, v1")
    a("v_lshlrev_b32 v10, 15, v9\nv_lshl_add_u32 v10, v8, 4, v10")
    a("v_lshlrev_b32 v11, 31, v9\nv_lshl_add_u32 v11, v8, 3, v11")
    a(f"s_lshl_b32 s30, {sQT}, 1\ns_add_u32 s30, s30, s83")
    a(f"s_lshl_b32 s31, {sH}, 16\ns_lshl_b32 s3, s30, 10\ns_add_u32 s31, s31, s3\ns_add_u32 s31, s31, {O1}")
    a(f"s_lshl_b32 s32, {sH}, 14\ns_lshl_b32 s3, s30, 9\ns_add_u32 s32, s32, s3\ns_add_u32 s32, s32, {O2}")
    a(f"s_lshl_b32 s33, s30, 5\ns_add_u32 s33, s33, {sH}\ns_lshl_b32 s33, s33, 7\ns_add_u32 s33, s33, {FLO}")
    lds_wait(C_O0, 2, 6, 7, sleep=0)
    R = lambda k: 64 + 16 * k
    for k in range(2):
        a(f"ds_read_b64 {v(R(k) + 12, 2)}, v5 offset:{3584 * k + 3072}")
    for k in range(2):
        for q in range(3):
            a(f"ds_read_b128 {v(R(k) + 4 * q, 4)}, v4 offset:{3584 * k + 1024 * q}")
    a("s_waitcnt lgkmcnt(6)")
    for k in range(2):
        t = 12 + 4 * k
        a(f"v_max_f32 v{t}, {v(MM(k))}, {v(R(k) + 13)}")
        a(f"v_sub_f32 v{t + 2}, {v(R(k) + 13)}, v{t}\nv_sub_f32 v{t}, {v(MM(k))}, v{t}")
        a(f"v_exp_f32 v{t}, v{t}\nv_exp_f32 v{t + 2}, v{t + 2}")
    for k in range(2):
        t = 12 + 4 * k
        a(f"v_mul_f32 v{t + 1}, v{t}, {v(OO(k) + 12)}\nv_fma_f32 v{t + 1}, v{t + 2}, {v(R(k) + 12)}, v{t + 1}")
        a(f"v_rcp_f32 v{t + 1}, v{t + 1}")
    for k in range(2):
        t = 12 + 4 * k
        a(f"v_mul_f32 v{t}, v{t}, v{t + 1}\nv_mul_f32 v{t + 2}, v{t + 2}, v{t + 1}")
    for k in range(2):
        t = 12 + 4 * k
        a(f"s_waitcnt lgkmcnt({3 * (1 - k)})")
        for r in range(0, 12, 2):
            a(f"v_pk_mul_f32 {v(OO(k) + r, 2)}, {v(OO(k) + r, 2)}, {v(t, 2)} op_sel_hi:[1,0]")
        for r in range(0, 12, 2):
            a(f"v_pk_fma_f32 {v(OO(k) + r, 2)}, {v(R(k) + r, 2)}, {v(t + 2, 2)}, {v(OO(k) + r, 2)} op_sel_hi:[1,0,1]")
        for r in range(6):
            a(f"v_cvt_pk_bf16_f32 {v(OO(k) + r)}, {v(OO(k) + 2 * r)}, {v(OO(k) + 2 * r + 1)}")
        a(f"buffer_store_dwordx4 {v(OO(k), 4)}, v10, {sWS}, s31 offen offset:{512 * k} sc1")
        a(f"buffer_store_dwordx2 {v(OO(k) + 4, 2)}, v11, {sWS}, s32 offen offset:{256 * k} sc1")
    stamp(8)
    a("s_waitcnt vmcnt(0)")
    set_flag("s33", 16)
    stamp(9)
    dump_stamps()
    a("s_endpgm")


def g_gemm2():
    a.label("L_G2")
    stamp(6)
    GA = lambda sb, blk: 64 + 20 * sb + 4 * blk
    UB = lambda slot, blk: 144 + 20 * slot + 4 * blk
    WF = lambda sb: 32 + 4 * sb
    vD = [2, 3, 4, 5]
    vR = [6, 7, 8, 9]
    vU = 30
    sSB, sDB, sWOFF, sUOFF, sM0 = "s16", "s17", "s18", "s19", "s23"
    a(f"s_lshl_b32 {sSB}, {sXCD}, 2\ns_lshr_b32 s3, {sI}, 3\ns_add_u32 {sSB}, {sSB}, s3\ns_and_b32 {sDB}, {sI}, 7")
    a("v_lshrrev_b32 v10, 3, v1\nv_lshlrev_b32 v10, 12, v10")
    a("v_lshrrev_b32 v26, 4, v1\nv_lshlrev_b32 v11, 1, v26\nv_and_b32 v12, 7, v1\nv_xor_b32 v11, v11, v12\nv_lshl_add_u32 v10, v11, 4, v10")
    for j in range(4):
        a(f"v_add_u32 {v(vD[j])}, {j * (8 * 4096 - 1024)}, v10")
    a(f"s_mul_i32 {sWOFF}, {sW}, {384 * 4096}\ns_lshl_b32 s3, {sSB}, 7\ns_add_u32 {sWOFF}, {sWOFF}, s3")
    a(f"s_lshl_b32 {sM0}, {sW}, 14\ns_add_u32 {sM0}, {sM0}, {RINGB}")
    a("v_bfe_u32 v10, v1, 2, 3")
    a("v_lshrrev_b32 v11, 5, v1\nv_lshl_add_u32 v11, v11, 4, v10\nv_lshlrev_b32 v11, 7, v11")
    a(f"v_and_b32 v12, 3, v1\nv_lshl_add_u32 v11, v12, 3, v11\nv_add_u32 v11, {sM0}, v11")
    a(f"v_lshrrev_b32 v10, 1, v10\nv_xor_b32 v10, {sW}, v10")
    for sb in range(4):
        a(f"v_xor_b32 v12, {sb}, v10\nv_lshl_add_u32 {v(vR[sb])}, v12, 5, v11")
    a(f"v_mul_u32_u24 v10, 10240, v26\nv_and_b32 v27, 15, v1\nv_lshl_add_u32 {v(vU)}, v27, 4, v10")
    a(f"s_mul_i32 {sUOFF}, {sW}, {12 * 40960}\ns_mul_i32 s3, {sDB}, 1280\ns_add_u32 {sUOFF}, {sUOFF}, s3\ns_add_u32 {sUOFF}, {sUOFF}, {UU}")

    def issue_w(slot):
        dma_group(vD, sW2, sWOFF, (sM0, 4096 * slot), OPT["ntw2"])
        a(f"s_add_u32 {sWOFF}, {sWOFF}, {32 * 4096}")

    def issue_u(slot):
        for blk in range(5):
            a(f"buffer_load_dwordx4 {v(UB(slot, blk), 4)}, {v(vU)}, {sWS}, {sUOFF} offen offset:{256 * blk} sc1")
        a(f"s_add_u32 {sUOFF}, {sUOFF}, 40960")

    a(f"s_setprio {OPT['gprio_m']}")
    for s in range(3):
        issue_w(s)
    a(f"s_setprio {OPT['gprio_v']}")
    a("v_mul_u32_u24 v10, 43, v1\nv_lshrrev_b32 v10, 9, v10\nv_mul_u32_u24 v11, 12, v10\nv_sub_u32 v11, v1, v11\nv_min_u32 v10, 2, v10")
    a(f"s_mul_i32 s3, {sDB}, 80\ns_lshr_b32 s3, s3, 5\nv_add_u32 v10, s3, v10\nv_mul_u32_u24 v10, 48, v10")
    a(f"s_mul_i32 s3, {sW}, 12\nv_add3_u32 v10, v10, v11, s3\nv_lshlrev_b32 v10, 4, v10\nv_add_u32 v10, {FLU}, v10")
    poll(10, 12, sleep=8)
    stamp(7)
    a(f"s_setprio {OPT['gprio_m']}")
    LA = OPT.get("g2la", 3)
    for s in range(LA):
        issue_u(s)

    def stage_ops(slot, with_w):
        ops = []
        if with_w and OPT.get("x_now2"):
            ops += [[f"buffer_load_dwordx4 v[48:51], {v(vU)}, {sWS}, {sUOFF} offen sc1"]] * 4
        elif with_w:
            ops.append([f"s_add_u32 m0, {sM0}, {4096 * slot}", "s_nop 0", f"buffer_load_dwordx4 {v(vD[0])}, {sW2}, {sWOFF} offen {OPT['ntw2']} lds"])
            for j in range(1, 4):
                ops.append([f"buffer_load_dwordx4 {v(vD[j])}, {sW2}, {sWOFF} offen offset:{1024 * j} {OPT['ntw2']} lds"])
            ops[-1].append(f"s_add_u32 {sWOFF}, {sWOFF}, {32 * 4096}")
        for blk in range(5):
            ops.append([f"buffer_load_dwordx4 {v(UB(slot, blk), 4)}, {v(vU)}, {sWS}, {sUOFF} offen offset:{256 * blk} sc1"])
        ops[-1].append(f"s_add_u32 {sUOFF}, {sUOFF}, 40960")
        return ops

    nops = lambda st: 0 if st >= 12 else (5 if st < 3 else 9)
    for s in range(12 if not OPT.get("x_nog2") else 0):
        slot = s % 4
        n = sum(nops(st) for st in range(s + 1, s + LA))
        a(f"s_waitcnt vmcnt({n})")
        for sb in range(4):
            for p in range(2):
                a(f"ds_read_b64_tr_b16 {v(WF(sb) + 2 * p, 2)}, {v(vR[sb])} offset:{4096 * slot + 1024 * p}")
        ops = stage_ops((s + LA) % 4, s + LA >= 3) if s + LA < 12 else []
        if not OPT.get("g2spread"):
            for o in ops:
                for x in o:
                    a(x)
            ops = []
        k = 0
        for sb in range(4):
            a(f"s_waitcnt lgkmcnt({2 * (3 - sb)})")
            for blk in range(5):
                if not OPT.get("x_nomfma"):
                    mfma16(GA(sb, blk), UB(slot, blk), WF(sb), "0" if s == 0 else None)
                k += 1
                if k % 2 == 0 and ops:
                    for x in ops.pop(0):
                        a(x)
                    if OPT.get("g2sleep"):
                        a(f"s_sleep {OPT['g2sleep']}")
        assert not ops
    stamp(8)
    a(f"s_setprio {OPT['gprio_v']}")
    a(f"s_lshl_b32 s24, {sSB}, 2\ns_add_u32 s24, s24, {sW}")
    a(f"v_lshrrev_b32 v10, 3, v27\nv_lshlrev_b32 v10, 7, v10\nv_and_b32 v11, 7, v27\nv_lshl_add_u32 v10, v11, 2, v10")
    a(f"s_lshl_b32 s3, s24, 8\ns_add_u32 s3, s3, {GATE}\nbuffer_load_dword v20, v10, {sWS}, s3 offen sc1")
    a(f"v_lshlrev_b32 v10, 1, v27\ns_lshl_b32 s3, s24, 5\nbuffer_load_ushort v22, v10, {sB2}, s3 offen")
    a(f"v_lshlrev_b32 v10, 4, v1\nv_add_u32 v11, {sM0}, v10")
    for k in (1, 2, 3):
        for q in range(5):
            a(f"ds_write_b128 v11, {v(GA(k, q), 4)} offset:{5120 * (k - 1) + 1024 * q}")
    lds_arrive(C_G2, vCN, vONE)
    for k in (1, 2, 3):
        a(f"s_xor_b32 s3, {sW}, {k}\ns_lshl_b32 s3, s3, 14\ns_add_u32 s3, s3, {RINGB}\nv_add_u32 v{15 + k}, s3, v10")
    lds_wait(C_G2, 4, vCN, 12)
    for k in (1, 2, 3):
        for q in range(5):
            a(f"ds_read_b128 {v(GA(k, q), 4)}, v{15 + k} offset:{5120 * (k - 1) + 1024 * q}")
    a("s_waitcnt lgkmcnt(0)")
    lds_arrive(C_G3, vCN, vONE)
    for k in (1, 2, 3):
        for r in range(0, 20, 2):
            a(f"v_pk_add_f32 {v(64 + r, 2)}, {v(64 + r, 2)}, {v(64 + 20 * k + r, 2)}")
    a("s_waitcnt vmcnt(0)\nv_lshlrev_b32 v22, 16, v22\nv_sub_f32 v24, 1.0, v20")
    for r in range(0, 20, 2):
        a(f"v_pk_add_f32 {v(64 + r, 2)}, {v(64 + r, 2)}, v[22:23] op_sel_hi:[1,0]")
    for r in range(0, 20, 2):
        a(f"v_pk_mul_f32 {v(64 + r, 2)}, {v(64 + r, 2)}, v[24:25] op_sel_hi:[1,0]")
    vO = [2, 3, 4, 5, 6]
    for j in range(5):
        a(f"v_add_u32 v10, {64 * j}, v1\nv_mul_u32_u24 v11, 205, v10\nv_lshrrev_b32 v11, 11, v11")
        a(f"v_mul_u32_u24 v11, {1280 - 160}, v11\nv_lshl_add_u32 {v(vO[j])}, v10, 4, v11")
        if j in (1, 2, 3):
            a(f"v_subrev_u32 {v(vO[j])}, {1024 * j}, {v(vO[j])}")
    a(f"s_mul_i32 {sWOFF}, {sW}, {160 * 1280}\ns_mul_i32 s3, {sDB}, 160\ns_add_u32 {sWOFF}, {sWOFF}, s3\ns_mul_i32 {sM0}, {sW}, 25600")
    lds_wait(C_G3, 4, vCN, 12)
    a(f"s_setprio {OPT['gprio_m']}")
    for g in range(5 if not OPT.get("x_nowo") else 0):
        dma_group(vO[:4], sWO, sWOFF, (sM0, 5120 * g), OPT["ntwo"])
        dma_group(vO[4:], sWO, sWOFF, (sM0, 5120 * g + 4096), OPT["ntwo"])
        a(f"s_add_u32 {sWOFF}, {sWOFF}, {32 * 1280}")
        if OPT.get("wowait", 1):
            a("s_waitcnt vmcnt(2)")
    a(f"s_setprio {OPT['gprio_v']}")
    vA1, vA1b, vA2, vA2b = 6, 7, 8, 9
    a("v_bfe_u32 v10, v1, 2, 3\nv_lshrrev_b32 v11, 5, v1\nv_mul_u32_u24 v11, 20, v11\nv_add_u32 v10, v10, v11\nv_mul_u32_u24 v10, 160, v10")
    a("v_and_b32 v12, 3, v1")
    a("s_waitcnt vmcnt(0)")
    lds_arrive(C_G4, vCN, vONE)
    a(f"v_lshl_add_u32 {v(vA1)}, v12, 3, v10\nv_add_u32 {v(vA1b)}, 51200, {v(vA1)}")
    a("v_bfe_u32 v10, v1, 2, 2\nv_mul_u32_u24 v11, 20, v26\nv_add3_u32 v10, v10, v11, 16\nv_mul_u32_u24 v10, 160, v10")
    a(f"v_lshl_add_u32 {v(vA2)}, v12, 3, v10\nv_add_u32 {v(vA2b)}, 51200, {v(vA2)}")
    vO1, vO2 = 2, 3
    a(f"v_lshlrev_b32 v10, 15, v26\nv_lshl_add_u32 {v(vO1)}, v27, 4, v10")
    a(f"v_lshlrev_b32 v10, 14, v26\nv_lshl_add_u32 {v(vO2)}, v27, 3, v10")
    a(f"s_lshl_b32 s26, s24, 8\ns_add_u32 s26, s26, {O1}\ns_lshl_b32 s27, s24, 7\ns_add_u32 s27, s27, {O2}")
    a(f"v_mul_u32_u24 v4, 1280, v27\nv_lshl_add_u32 v4, v26, 3, v4")
    a(f"s_mul_i32 s28, s24, {16 * 1280}\ns_mul_i32 s3, {sDB}, 160\ns_add_u32 s28, s28, s3")
    a(f"v_and_b32 v10, 31, v1\ns_lshl_b32 s3, {sSB}, 12\ns_add_u32 s3, s3, {FLO}\nv_lshl_add_u32 v5, v10, 7, s3")
    AA = lambda blk: 84 + 4 * blk
    OF = lambda t: 104 + 4 * t
    WB = lambda buf, blk: 184 + 20 * buf + 4 * blk

    def wo_reads(t):
        out = []
        for blk in range(5):
            for p in range(2):
                if t < 16:
                    off = (40 * t + 8 * p) * 160 + 32 * blk
                    base = vA1
                    if off >= 51200:
                        off -= 51200
                        base = vA1b
                else:
                    off = (160 * (t - 16) + 80 * p) * 160 + 32 * blk
                    base = vA2
                    if off >= 51200:
                        off -= 51200
                        base = vA2b
                out.append(f"ds_read_b64_tr_b16 {v(WB(t % 3, blk) + 2 * p, 2)}, {v(base)} offset:{off}")
        return out

    lds_wait(C_G4, 4, vCN, 12)
    for t in range(2):
        for x in wo_reads(t):
            a(x)
    stamp(9)
    lds_wait(C_TD, 4, vCN, 12, sleep=8)
    poll(5, 10, sleep=OPT.get('osleep', 1))
    stamp(10)
    a("s_setprio 3")
    for t in range(16):
        a(f"buffer_load_dwordx4 {v(OF(t), 4)}, {v(vO1)}, {sWS}, s26 offen sc1\ns_add_u32 s26, s26, 0x20000")
    for t in range(4):
        for p in range(2):
            a(f"buffer_load_dwordx2 {v(OF(16 + t) + 2 * p, 2)}, {v(vO2)}, {sWS}, s27 offen sc1\ns_add_u32 s27, s27, 0x10000")
    for t in range(20):
        nv = 23 - t if t < 16 else 2 * (19 - t)
        rd = wo_reads(t + 2) if t + 2 < 20 else []
        nl = 10 if (0 < t < 19) else 0
        a(f"s_waitcnt vmcnt({nv}) lgkmcnt({nl})")
        for blk in range(5):
            mfma16(AA(blk), WB(t % 3, blk), OF(t), "0" if t == 0 else None)
            for x in rd[2 * blk:2 * blk + 2]:
                a(x)
    for blk in range(5):
        for r in (0, 2):
            a(f"v_pk_fma_f32 {v(64 + 4 * blk + r, 2)}, {v(AA(blk) + r, 2)}, v[20:21], {v(64 + 4 * blk + r, 2)} op_sel_hi:[1,0,1]")
        d = 64 + 4 * blk
        a(f"v_cvt_pk_bf16_f32 {v(d)}, {v(d)}, {v(d + 1)}\nv_cvt_pk_bf16_f32 {v(d + 1)}, {v(d + 2)}, {v(d + 3)}")
        a(f"buffer_store_dwordx2 {v(d, 2)}, v4, {sOUT}, s28 offen offset:{32 * blk}")
    stamp(11)
    L = a.newlabel("noe")
    a(f"s_or_b32 s3, s2, {sW}\ns_cmp_lg_u32 s3, 0\ns_cbranch_scc1 {L}\ns_mov_b32 s85, {WS_E}")
    set_flag("s85", 16)
    a.label(L)
    dump_stamps()
    a.label("L_end")
    a("s_endpgm")


entry()
t_front()
t_att()
ROLE[0] = "M"
m_front()
g_gemm2()

lines = [l.replace("CODE_BYTES", "0x8000") for l in a.lines]
lines = fix_hazards(lines, verbose=bool(OPT.get("v")))
lines = fix_align(lines, verbose=bool(OPT.get("v")))
from asmlib import sizes_of
total = sum(sizes_of(lines)) + 64
code_bytes = total // 128 * 128 - 256
lines = [l.replace("s_mov_b32 s70, 0x8000", f"s_mov_b32 s70, {hex(code_bytes)}") for l in lines]

ref = open(os.path.join(os.path.dirname(os.path.abspath(__file__)), "header.txt")).read()
out = ref
out += f"; @launch grid=(256,1,1) block=(512,1,1) lds={LDS_SIZE}\n"
out += f'.amdgcn_target "amdgcn-amd-amdhsa--gfx950"\n.text\n.globl {NAME}_kernel\n.p2align 8\n.type {NAME}_kernel,@function\n{NAME}_kernel:\n'
for l in lines:
    if l.startswith(";@"):
        continue
    out += (l if l.endswith(":") else "    " + l) + "\n"
out += f""".section .rodata,"a"
.p2align 6
.amdhsa_kernel {NAME}_kernel
  .amdhsa_next_free_vgpr 256
  .amdhsa_next_free_sgpr 102
  .amdhsa_accum_offset 256
  .amdhsa_group_segment_fixed_size 0
  .amdhsa_kernarg_size 96
  .amdhsa_user_sgpr_count 2
  .amdhsa_user_sgpr_kernarg_segment_ptr 1
  .amdhsa_system_sgpr_workgroup_id_x 1
.end_amdhsa_kernel
"""
open(sys.argv[1], "w").write(out)
print("code bytes", total, "lds", LDS_SIZE, "ws_end", hex(WS_END))
```

```python
import sys, os, struct, math
sys.path.insert(0, os.path.dirname(os.path.abspath(__file__)))
from asmlib import Asm, fix_hazards, fix_align

NAME = "gated_mix__mha_block__mixer_token_mlp__prompt"
OPT = dict(hold=1, npre=2, qb=14, rot=1, rot2=1, ntx="", ntw="", ntw1="", ntw2="", ntwo="", g2la=2, g2spread=1, osleep=1, aprio=1, gprio_v=3, gprio_m=0, stamps=0, pattern="even", spin=1 << 16, force_fb=0)
for a in sys.argv[2:]:
    k, v = a.split("=")
    OPT[k] = int(v) if v.lstrip("-").isdigit() else v


def f2u(x):
    return struct.unpack("<I", struct.pack("<f", x))[0]


WS_E = 0
FLH = 0x1000
FLQ = 0x2000
FLU = 0x4000
FLP = 0x8000
FLO = 0x18000
GATE = 0x38000
DBGT = 0x40000
QK = 0x90000
assert DBGT + 2048 * 64 <= QK
VV = QK + 320 * 16384
VCT = 64 * 8704
HT = VV + 5 * VCT
UU = HT + 256 * 10240
O1 = UU + 96 * 2 * 640 * 16
O2 = O1 + 32 * 2 * 2048 * 16
PB = O2 + 32 * 2048 * 8
WS_END = PB + 60 * 16 * 12288

RINGA = 0
RINGB = 65536
XCH = 131072
CNT = XCH + 4 * 7168
LDS_SIZE = CNT + 64
C_R, C_G2, C_G3, C_G4, C_O0, C_O1, C_TD = [4 * i for i in range(7)]

sX, sWQ, sWS = "s[4:7]", "s[8:11]", "s[12:15]"
sW1, sW2, sWO, sB1, sB2, sGW, sOUT, sCODE = ["s[%d:%d]" % (i, i + 3) for i in range(40, 72, 4)]
sNONCE = "s[74:75]"
sW8, sW, sXCD, sI = "s76", "s77", "s78", "s79"
sTT, sCT = "s80", "s81"
sFT, sDT, sKQ = "s36", "s37", "s22"
STAMP0 = 86

a = Asm()


def v(i, n=1):
    return f"v{i}" if n == 1 else f"v[{i}:{i + n - 1}]"


def srd(dst, lo, nbytes):
    d = int(dst[2:dst.index(":")])
    a(f"s_mov_b32 s{d}, s{lo}\ns_mov_b32 s{d + 1}, s{lo + 1}\ns_mov_b32 s{d + 2}, {nbytes}\ns_mov_b32 s{d + 3}, 0x20000")


ROLE = ["T"]


def stamp(i, diag=False):
    if OPT.get("diag") and ROLE[0] == "T" and not diag and i > 0:
        return
    if diag and not OPT.get("diag"):
        return
    if OPT["stamps"]:
        a(f"s_memrealtime s[100:101]\ns_waitcnt lgkmcnt(0)\ns_mov_b32 s{STAMP0 + i}, s100")


def cstamp(i):
    if OPT["stamps"] and not OPT.get("diag"):
        a(f"s_memtime s[100:101]\ns_waitcnt lgkmcnt(0)\ns_mov_b32 s{STAMP0 + i}, s100")


def probe_end():
    if OPT.get("probe") != ROLE[0]:
        return
    L, Ld = a.newlabel("pr"), a.newlabel("prd")
    if OPT.get("pwg", -1) >= 0:
        a(f"s_cmp_lg_u32 s2, {OPT['pwg']}\ns_cbranch_scc1 {Ld}")
    else:
        a(f"s_cmp_ge_u32 {sI}, 30\ns_cbranch_scc1 {Ld}")
    if OPT["pb"] >= 0:
        a(f"s_add_u32 s3, s{STAMP0 + OPT['pb']}, 10000")
    else:
        a(f"s_add_u32 s3, s98, 10000")
    a.label(L)
    a(f"s_sleep 1\ns_memrealtime s[100:101]\ns_waitcnt lgkmcnt(0)\ns_sub_u32 s82, s100, s3\ns_cmp_lt_i32 s82, 0\ns_cbranch_scc1 {L}")
    a.label(Ld)


def dump_stamps():
    probe_end()
    if OPT["stamps"] and not OPT.get("probe"):
        a(f"s_lshl_b32 s3, s2, 3\ns_add_u32 s3, s3, {sW8}\ns_lshl_b32 s3, s3, 6\ns_add_u32 s3, s3, {DBGT}")
        a("v_mov_b32 v2, 0")
        for q in range(3):
            for r in range(4):
                a(f"v_mov_b32 v{4 + r}, s{STAMP0 + 4 * q + r}")
            a(f"buffer_store_dwordx4 v[4:7], v2, {sWS}, s3 offen offset:{16 * q}")
            a("s_nop 1")


def lds_arrive(cnt, vC, vOne):
    a(f"s_mov_b64 exec, 1\nds_add_u32 {v(vC)}, {v(vOne)} offset:{cnt}\ns_mov_b64 exec, -1")


def lds_wait(cnt, n, vC, vT, sleep=1):
    L, Ld = a.newlabel("lw"), a.newlabel("lwd")
    a(f"s_mov_b32 s82, {OPT['spin'] * 4}")
    a.label(L)
    a(f"ds_read_b32 {v(vT)}, {v(vC)} offset:{cnt}\ns_waitcnt lgkmcnt(0)\nv_readfirstlane_b32 s3, {v(vT)}")
    a(f"s_cmp_ge_u32 s3, {n}\ns_cbranch_scc1 {Ld}")
    if sleep:
        a(f"s_sleep {sleep}")
    a(f"s_sub_u32 s82, s82, 1\ns_cmp_lg_u32 s82, 0\ns_cbranch_scc1 {L}")
    a.label(Ld)


def poll(vA, vT, sleep=2):
    L, Ld = a.newlabel("po"), a.newlabel("pod")
    a(f"s_mov_b32 s82, {OPT['spin']}")
    a.label(L)
    a(f"buffer_load_dwordx2 {v(vT, 2)}, {v(vA)}, {sWS}, 0 offen sc1\ns_waitcnt vmcnt(0)")
    a(f"v_cmp_ne_u64 vcc, {sNONCE}, {v(vT, 2)}\ns_cbranch_vccz {Ld}")
    if sleep:
        a(f"s_sleep {sleep}")
    a(f"s_sub_u32 s82, s82, 1\ns_cmp_lg_u32 s82, 0\ns_cbranch_scc1 {L}")
    a.label(Ld)


def set_flag(soff, vT):
    a(f"v_mov_b32 {v(vT)}, s74\nv_mov_b32 {v(vT + 1)}, s75\nv_mov_b32 {v(vT + 2)}, 0")
    a(f"s_mov_b64 exec, 1\nbuffer_store_dwordx2 {v(vT, 2)}, {v(vT + 2)}, {sWS}, {soff} offen sc1\ns_mov_b64 exec, -1")


def mfma32(d, x, y, c=None):
    a(f"v_mfma_f32_32x32x16_bf16 {v(d, 16)}, {v(x, 4)}, {v(y, 4)}, {v(d, 16) if c is None else c}")


def mfma32k8(d, x, y, c=None):
    a(f"v_mfma_f32_32x32x8_bf16 {v(d, 16)}, {v(x, 2)}, {v(y, 2)}, {v(d, 16) if c is None else c}")


def mfma16(d, x, y, c=None):
    a(f"v_mfma_f32_16x16x32_bf16 {v(d, 4)}, {v(x, 4)}, {v(y, 4)}, {v(d, 4) if c is None else c}")


vL = 1
vCN = 254
vONE = 255


LNX, LNG = 200, 210
NLP = 10


def build_ws_and_nonce_load():
    srd(sWS, 38, WS_END)
    a(f"s_load_dwordx2 s[72:73], s[38:39], {WS_E}")


def make_nonce():
    a("s_mul_i32 s74, s72, 1664525\ns_add_u32 s74, s74, 1013904223")
    a("s_mul_i32 s75, s73, 22695477\ns_add_u32 s75, s75, 0x3c6ef35f")


def g1_tile():
    a(f"s_mul_i32 s3, {sI}, 52\ns_lshr_b32 s3, s3, 8\ns_mul_i32 {sDT}, s3, 5\ns_sub_u32 {sDT}, {sI}, {sDT}")
    a(f"s_and_b32 {sFT}, {sXCD}, 1\ns_mul_i32 {sFT}, {sFT}, 6\ns_add_u32 {sFT}, {sFT}, s3\ns_lshr_b32 {sKQ}, {sXCD}, 1")


def entry():
    a("s_cmp_ge_u32 s2, 256\ns_cbranch_scc1 L_end")
    if OPT.get("probe"):
        a("s_memrealtime s[98:99]")
    a("s_load_dwordx16 s[16:31], s[0:1], 0\ns_load_dwordx8 s[32:39], s[0:1], 64")
    a("s_getpc_b64 s[68:69]")
    a("v_lshrrev_b32 v2, 6, v0\nv_and_b32 v1, 63, v0")
    a(f"s_and_b32 {sXCD}, s2, 7\ns_lshr_b32 {sI}, s2, 3")
    a(f"v_readfirstlane_b32 {sW8}, v2")
    a(f"s_and_b32 s3, {sXCD}, 1\ns_mul_i32 s3, s3, 30\ns_add_u32 s3, s3, {sI}\ns_lshr_b32 {sCT}, s3, 2\ns_and_b32 {sTT}, s3, 3")
    a(f"s_and_b32 s3, {sXCD}, 6\ns_lshl_b32 s3, s3, 1\ns_add_u32 {sTT}, {sTT}, s3")
    a(f"s_and_b32 {sW}, {sW8}, 3\ns_and_b32 s83, {sW8}, 1\ns_lshr_b32 s84, {sW}, 1")
    a(f"s_cmp_ge_u32 {sW8}, 4\ns_cbranch_scc1 L_T")
    a("s_and_b32 s68, s68, 0xffffff00\ns_mov_b32 s70, CODE_BYTES\ns_mov_b32 s71, 0x20000")
    a(f"s_mul_i32 s3, {sI}, {NLP * 128}\nv_lshlrev_b32 v8, 7, v0")
    L = a.newlabel("npf")
    a(f"s_cmp_lg_u32 {sW8}, 0\ns_cbranch_scc1 {L}")
    a(f"s_mov_b64 exec, {hex((1 << NLP) - 1)}\nbuffer_load_dword v253, v8, {sCODE}, s3 offen\ns_mov_b64 exec, -1")
    a.label(L)
    a(f"s_lshl_b32 s3, s2, 2\ns_add_u32 s3, s3, {sW}\ns_mul_i32 s3, s3, 2560")
    a("v_lshrrev_b32 v9, 5, v1\nv_mul_u32_u24 v10, 1280, v9\nv_and_b32 v8, 31, v1")
    a("v_lshlrev_b32 v14, 4, v8\nv_lshlrev_b32 v15, 3, v8\nv_add_u32 v12, v10, v14\nv_add_u32 v13, v10, v15")
    a("s_waitcnt lgkmcnt(0)")
    srd(sX, 16, 2048 * 1280)
    srd(sGW, 32, 1280)
    a(f"buffer_load_dwordx4 {v(LNX, 4)}, v12, {sX}, s3 offen")
    a(f"buffer_load_dwordx4 {v(LNX + 4, 4)}, v12, {sX}, s3 offen offset:512")
    a(f"buffer_load_dwordx2 {v(LNX + 8, 2)}, v13, {sX}, s3 offen offset:1024")
    a(f"buffer_load_dwordx4 {v(LNG, 4)}, v14, {sGW}, 0 offen")
    a(f"buffer_load_dwordx4 {v(LNG + 4, 4)}, v14, {sGW}, 0 offen offset:512")
    a(f"buffer_load_dwordx2 {v(LNG + 8, 2)}, v15, {sGW}, 0 offen offset:1024")
    build_ws_and_nonce_load()
    a("s_branch L_M")


class VM:
    def __init__(self):
        self.log = []

    def op(self, tag, text):
        a(text)
        self.log.append(tag)

    def wait(self, tag, extra=""):
        last = max(i for i, t in enumerate(self.log) if t == tag)
        n = len(self.log) - 1 - last
        assert n < 64
        a(f"s_waitcnt vmcnt({n}){extra}")


FB = max(2, OPT["npre"])


def t_front():
    a.label("L_T")
    vXO, vWO, vHO, vW1 = [2, 3, 4, 5], [6, 7, 8, 9], [10, 11], [12, 13, 14, 15]
    sXO, sWOF, sMA, sMB = "s60", "s61", "s62", "s63"
    a(f"s_lshl_b32 s3, {sTT}, 2\ns_add_u32 s3, s3, {sW}\ns_mul_i32 s3, s3, {32 * 1280}")
    a("v_lshrrev_b32 v16, 3, v1\nv_mul_u32_u24 v16, 1280, v16\nv_add_u32 v16, s3, v16")
    a("v_and_b32 v17, 7, v1\nv_lshrrev_b32 v18, 4, v1\nv_xor_b32 v17, v17, v18")
    a(f"v_lshl_add_u32 {v(vXO[0])}, v17, 4, v16\nv_xor_b32 v19, 64, {v(vXO[0])}")
    a(f"v_add_u32 {v(vXO[1])}, {8 * 1280 - 1024}, v19\nv_add_u32 {v(vXO[2])}, {2 * (8 * 1280 - 1024)}, {v(vXO[0])}\nv_add_u32 {v(vXO[3])}, {3 * (8 * 1280 - 1024)}, v19")
    a(f"s_mul_i32 s3, {sW}, {16 * 3840}\ns_lshl_b32 s85, {sCT}, 8\ns_add_u32 s3, s3, s85")
    a("v_and_b32 v17, 15, v1\nv_lshlrev_b32 v19, 2, v18\nv_xor_b32 v17, v17, v19\nv_lshlrev_b32 v17, 4, v17")
    a(f"v_mul_u32_u24 v16, 3840, v18\nv_add3_u32 {v(vWO[0])}, v16, v17, s3")
    for j in range(1, 4):
        a(f"v_add_u32 {v(vWO[j])}, {j * (4 * 3840 - 1024)}, {v(vWO[0])}")
    a(f"s_lshl_b32 {sMA}, {sW}, 12\ns_add_u32 {sMB}, {sMA}, {RINGB}")
    if OPT["rot"]:
        a(f"s_and_b32 s3, {sTT}, 3\ns_mul_i32 s3, s3, 5\ns_add_u32 s3, s3, 1\ns_lshr_b32 s3, s3, 1")
        a(f"s_add_u32 s3, s3, {sCT}")
        if OPT["rot"] == 1:
            a(f"s_lshr_b32 s85, {sXCD}, 1\ns_add_u32 s3, s3, s85")
        a("s_mul_i32 s85, s3, 26\ns_lshr_b32 s85, s85, 8\ns_mul_i32 s85, s85, 10\ns_sub_u32 s3, s3, s85")
        a(f"s_lshl_b32 {sXO}, s3, 7\ns_mul_i32 {sWOF}, s3, {64 * 3840}")
    else:
        a(f"s_mov_b32 {sXO}, 0\ns_mov_b32 {sWOF}, 0")
    a("s_waitcnt lgkmcnt(0)")
    stamp(0)
    srd(sX, 16, 2048 * 1280)
    srd(sWQ, 18, 640 * 3840)
    vm = VM()

    def group(tag, vregs, srdn, soff, mbase, moff, fl):
        a(f"s_add_u32 m0, {mbase}, {moff}")
        for j in range(4):
            vm.op(tag, f"buffer_load_dwordx4 {v(vregs[j])}, {srdn}, {soff} offen offset:{1024 * j} {fl} lds")

    def stage(s):
        slot = 16384 * (s % 4)
        if s < 10:
            group(s, vXO, sX, sXO, sMA, slot, OPT["ntx"])
            a(f"s_add_u32 {sXO}, {sXO}, 128")
            group(s, vWO, sWQ, sWOF, sMB, slot, OPT["ntw"])
            a(f"s_add_u32 {sWOF}, {sWOF}, {64 * 3840}\ns_cmp_eq_u32 {sXO}, 1280")
            a(f"s_cselect_b32 {sXO}, 0, {sXO}\ns_cselect_b32 {sWOF}, 0, {sWOF}")
            return
        if s == 10:
            if OPT["rot2"]:
                a(f"s_mul_i32 s3, {sDT}, 3\ns_add_u32 s3, s3, 1\ns_lshr_b32 s3, s3, 1\ns_add_u32 s3, s3, {sFT}\ns_and_b32 s3, s3, 7")
                a(f"s_mul_i32 {sXO}, s3, {8 * 10240}\ns_mul_i32 {sWOF}, s3, {64 * 3072}")
            else:
                a(f"s_mov_b32 {sXO}, 0\ns_mov_b32 {sWOF}, 0")
        group(s, vW1, sW1, sWOF, sMB, slot, OPT["ntw1"])
        a(f"s_add_u32 {sWOF}, {sWOF}, {64 * 3072}")
        if s == 10:
            vm.wait("hf")
            L = a.newlabel("hok")
            a(f"v_cmp_ne_u64 vcc, {sNONCE}, v[28:29]\ns_cbranch_vccz {L}")
            poll(30, 28, sleep=1)
            a.label(L)
        group(s, [vHO[0], vHO[0], vHO[1], vHO[1]], sWS, sXO, sMA, slot, "sc1")
        a(f"s_add_u32 {sXO}, {sXO}, {8 * 10240}\ns_cmp_eq_u32 {sXO}, {64 * 10240}")
        a(f"s_cselect_b32 {sXO}, 0, {sXO}\ns_cselect_b32 {sWOF}, 0, {sWOF}")

    def setup2():
        a("v_bfe_u32 v16, v1, 2, 2\nv_mul_u32_u24 v16, 1280, v16\nv_lshl_add_u32 v16, v18, 5, v16")
        a(f"v_and_b32 v19, 3, v1\nv_lshl_add_u32 v16, v19, 3, v16\ns_lshl_b32 s3, {sW}, 7\ns_add_u32 s3, s3, {XCH}\nv_add_u32 v16, s3, v16")
        a(f"v_lshlrev_b32 v19, 4, v1\ns_mul_i32 s85, s2, 10240\ns_lshl_b32 s3, {sW}, 10\ns_add_u32 s85, s85, s3\ns_add_u32 s85, s85, {HT}")
        a(f"v_mov_b32 {v(vCN)}, {CNT}\nv_mov_b32 {v(vONE)}, 1")
        a("s_waitcnt lgkmcnt(0)")
        make_nonce()

    def ln_store():
        for k in range(3):
            a(f"ds_read_b64_tr_b16 {v(192 + 4 * k, 2)}, v16 offset:{512 * k}\nds_read_b64_tr_b16 {v(194 + 4 * k, 2)}, v16 offset:{512 * k + 5120}")
        a(f"s_add_u32 s3, s85, 4096\ns_add_u32 s82, s85, 8192\ns_cmp_lt_u32 {sW}, 2\ns_cselect_b32 s82, s82, 0x80000000")
        for k, so in enumerate(("s85", "s3", "s82")):
            a(f"s_waitcnt lgkmcnt({4 - 2 * k})")
            vm.op("ln", f"buffer_store_dwordx4 {v(192 + 4 * k, 4)}, v19, {sWS}, {so} offen sc1")

    def ln_flag():
        a(f"s_lshl_b32 s85, s2, 4\ns_add_u32 s85, s85, {FLH}\ns_cmp_eq_u32 {sW}, 0\ns_cselect_b32 s85, s85, 0x80000000")
        set_flag("s85", 20)
        vm.log.append("lf")

    def setup3():
        g1_tile()
        srd(sW1, 24, 2048 * 3072)
        a(f"s_lshl_b32 s3, {sKQ}, 5\ns_add_u32 s3, s3, {sW}\ns_mul_i32 s3, s3, {16 * 3072}\ns_lshl_b32 s85, {sFT}, 8\ns_add_u32 s3, s3, s85")
        a(f"v_mul_u32_u24 v16, 3072, v18\nv_add3_u32 {v(vW1[0])}, v16, v17, s3")
        for j in range(1, 4):
            a(f"v_add_u32 {v(vW1[j])}, {j * (4 * 3072 - 1024)}, {v(vW1[0])}")
        a(f"s_lshl_b32 s3, {sKQ}, 5\ns_add_u32 s3, s3, {sW}\ns_mul_i32 s3, s3, 20480\ns_lshl_b32 s85, {sDT}, 11\ns_add_u32 s3, s3, s85\ns_add_u32 s3, s3, {HT}")
        a(f"v_add_u32 {v(vHO[0])}, s3, v19\nv_add_u32 {v(vHO[1])}, {10240 - 2048}, {v(vHO[0])}")
        a(f"s_lshl_b32 s3, {sKQ}, 10\ns_add_u32 s3, s3, {FLH}\nv_add_u32 v30, s3, v19")

    L = a.newlabel("nost0")
    a(f"s_cmp_ge_u32 {sI}, 30\ns_cbranch_scc1 {L}")
    stage(0)
    a.label(L)
    build_ws_and_nonce_load()
    a("v_lshlrev_b32 v19, 4, v1")
    setup3()
    att_setup_a()
    att_setup_b()
    setup2()
    a(f"s_cmp_ge_u32 {sI}, 30\ns_cbranch_scc1 L_T_idle")
    stage(1)
    vm.wait(0)
    a("s_barrier")
    stamp(1)
    if OPT.get("diag") == 1:
        stamp(1, True)
    ln_store()
    sched = {s: [s + 2] for s in range(0, 16)}
    if OPT["hold"]:
        sched[9] = []
        sched[10] = [11, 12]
    for x in sched[0]:
        stage(x)
    for s in range(1, 18):
        vm.wait(s)
        a("s_barrier")
        if 1 <= s - OPT.get("diag", 0) + 2 <= 11:
            stamp(s - OPT.get("diag", 0) + 2, True)
        if s == FB:
            ln_flag()
        if s == 10:
            stamp(2)
        for x in sched.get(s, []):
            if x == 9:
                vm.op("hf", f"buffer_load_dwordx2 v[28:29], v30, {sWS}, 0 offen sc1")
            stage(x)
    stamp(3)
    a("s_branch L_T_att")
    a.label("L_T_idle")
    a("s_barrier")
    ln_store()
    a("s_waitcnt vmcnt(0)\ns_barrier")
    ln_flag()


ACC = 64
ACC2 = 128
FX = lambda buf, tb: 32 + 16 * buf + 4 * tb
FW = lambda buf, cb: 40 + 16 * buf + 4 * cb
vXA = [2, 3, 4, 5]
vWA = [6, 7]
vHA = [24, 25]
vWB = [26, 27]


def tile_reads(n, mode):
    st, ks, buf = n // 4, n % 4, n & 1
    slot = (st + (10 if mode == "g1" else 0)) % 4
    wa = vWB if mode == "g1" else vWA
    r = []
    for cb in range(2):
        for p in range(2):
            r.append(f"ds_read_b64_tr_b16 {v(FW(buf, cb) + 2 * p, 2)}, {v(wa[cb])} offset:{slot * 16384 + (16 * ks + 4 * p) * 256}")
    if mode == "g1":
        x = [f"ds_read_b128 {v(FX(buf, tb), 4)}, {v(vHA[tb])} offset:{slot * 16384 + ks * 4096}" for tb in range(2)]
    else:
        x = [f"ds_read_b128 {v(FX(buf, tb), 4)}, {v(vXA[ks])} offset:{slot * 16384 + tb * 4096}" for tb in range(2)]
    return [r[0], r[1], x[0], x[1], r[2], r[3]]


def tile_loop(mode):
    N = 32 if mode == "g1" else 40
    acc = ACC2 if mode == "g1" else ACC
    for r in tile_reads(0, mode):
        a(r)
    for n in range(N):
        buf = n & 1
        rd = tile_reads(n + 1, mode) if n < N - 1 else []
        a("s_waitcnt lgkmcnt(0)")
        for q, (cb, tb) in enumerate([(0, 0), (0, 1), (1, 1), (1, 0)]):
            d = acc + 16 * (2 * cb + tb)
            c = "0" if (n == 0 and not (mode == "g1" and q == 0)) else None
            if mode == "v":
                mfma32(d, FX(buf, tb), FW(buf, cb), c)
            else:
                mfma32(d, FW(buf, cb), FX(buf, tb), c)
            if q == 0 and n % 4 == 3 and n < N - 1:
                bn = n // 4 + 1 + (10 if mode == "g1" else 0)
                if bn == FB or bn == OPT["qb"]:
                    a("s_waitcnt vmcnt(0)")
                a("s_barrier")
            if q == 0 and n == N - 1 and mode == "g1":
                lds_arrive(C_R, vCN, vONE)
            if q < 2:
                for r in rd[3 * q:3 * q + 3]:
                    a(r)
            if q == 2 and mode == "g1" and n % 4 == 3 and n // 4 + 11 == OPT["qb"]:
                L = a.newlabel("nq")
                a(f"s_cmp_lg_u32 {sW}, 0\ns_cbranch_scc1 {L}")
                a(f"s_mov_b64 exec, 1\nbuffer_store_dwordx2 v[28:29], v30, {sWS}, 0 offen sc1\ns_mov_b64 exec, -1")
                a.label(L)


def half_sum(xs, ts):
    for rot in (8, 4, 2, 1):
        for x in xs:
            a(f"v_add_f32_dpp {v(x)}, {v(x)}, {v(x)} row_ror:{rot} row_mask:0xf bank_mask:0xf")
    for x, t in zip(xs, ts):
        a(f"v_mov_b32 {v(t)}, {v(x)}")
    for x, t in zip(xs, ts):
        a(f"v_permlane16_swap_b32 {v(t)}, {v(x)}")
    for x, t in zip(xs, ts):
        a(f"v_add_f32 {v(x)}, {v(x)}, {v(t)}")


def m_front():
    a.label("L_M")
    stamp(0)
    a(f"v_mov_b32 {v(vCN)}, {CNT}\nv_mov_b32 {v(vONE)}, 1")
    a(f"v_mov_b32 v16, 0\nv_lshl_add_u32 v17, v1, 2, {v(vCN)}")
    L = a.newlabel("nz")
    a(f"s_cmp_lg_u32 {sW8}, 0\ns_cbranch_scc1 {L}")
    a("s_mov_b64 exec, 0xffff\nds_write_b32 v17, v16\ns_mov_b64 exec, -1")
    a.label(L)
    g1_tile()
    srd(sB1, 26, 3072)
    srd(sW2, 28, 1536 * 4096)
    srd(sWO, 20, 640 * 1280)
    srd(sB2, 30, 4096)
    srd(sOUT, 34, 2048 * 1280)
    a(f"s_lshr_b32 s26, {sKQ}, 1\ns_and_b32 s27, {sKQ}, 1")
    a(f"s_lshl_b32 s24, {sFT}, 1\ns_add_u32 s24, s24, s83\ns_lshl_b32 s24, s24, 1\ns_add_u32 s24, s24, s26")
    a(f"s_lshl_b32 s25, {sDT}, 1\ns_add_u32 s25, s25, s84\ns_lshl_b32 s25, s25, 1\ns_add_u32 s25, s25, s27")
    a("v_lshlrev_b32 v16, 30, v9\nv_lshl_add_u32 v16, v8, 1, v16\ns_lshl_b32 s3, s24, 6")
    a(f"buffer_load_ushort v20, v16, {sB1}, s3 offen\nv_mov_b32 v21, 0\nv_mov_b32 v22, 0x3f80\nv_mov_b32 v23, 0")
    a(f"s_mul_i32 s3, {sW}, 2560\ns_add_u32 s3, s3, {XCH}\nv_add_u32 v12, s3, v12\nv_add_u32 v13, s3, v13")
    a("v_bfe_u32 v10, v1, 1, 3\nv_xor_b32 v10, v10, v9\nv_lshlrev_b32 v10, 4, v10")
    a("s_lshl_b32 s3, s84, 13\nv_lshl_add_u32 v11, v8, 7, s3")
    for ks in range(4):
        a(f"v_xor_b32 v16, {32 * ks}, v10\nv_add_u32 {v(vXA[ks])}, v11, v16")
    a("v_bfe_u32 v10, v1, 2, 2")
    a("v_lshl_add_u32 v11, v9, 3, v10\nv_lshlrev_b32 v11, 8, v11")
    a("v_bfe_u32 v16, v1, 4, 1\nv_lshl_add_u32 v11, v16, 5, v11")
    a("v_and_b32 v16, 3, v1\nv_lshl_add_u32 v11, v16, 3, v11")
    a(f"v_add_u32 v11, {RINGB}, v11")
    a(f"s_lshl_b32 s3, s83, 1\nv_xor_b32 v16, s3, v10\nv_lshl_add_u32 {v(vWA[0])}, v16, 6, v11\nv_xor_b32 {v(vWA[1])}, 64, {v(vWA[0])}")
    a(f"s_lshl_b32 s3, s26, 6\nv_xor_b32 {v(vWB[0])}, s3, {v(vWA[0])}\nv_xor_b32 {v(vWB[1])}, s3, {v(vWA[1])}")
    a(f"s_lshl_b32 s3, s84, 1\ns_add_u32 s3, s3, s27\ns_lshl_b32 s3, s3, 9\nv_lshlrev_b32 v16, 11, v9\nv_add3_u32 {v(vHA[0])}, v16, v14, s3")
    a(f"v_xor_b32 {v(vHA[1])}, 512, {v(vHA[0])}")
    a(f"s_lshl_b32 s3, {sCT}, 4\ns_add_u32 s3, s3, {sTT}\ns_lshl_b32 s3, s3, 4\ns_add_u32 s3, s3, {FLQ}\nv_mov_b32 v30, s3")
    a(f"s_mov_b32 s28, 0x3f803f80\nv_mov_b32 v16, 0\nv_mov_b32 v17, 0\nv_mov_b32 v18, 0\nv_mov_b32 v19, 0")
    a("s_waitcnt lgkmcnt(0)")
    make_nonce()
    a("v_mov_b32 v28, s74\nv_mov_b32 v29, s75")
    X = 160
    a("s_waitcnt vmcnt(4)")
    stamp(1)
    for r in range(10):
        a(f"v_dot2_f32_bf16 v16, {v(LNX + r)}, s28, v16")
    for r in range(10):
        a(f"v_lshlrev_b32 {v(X + 2 * r)}, 16, {v(LNX + r)}\nv_and_b32 {v(X + 2 * r + 1)}, 0xffff0000, {v(LNX + r)}")
    a("s_waitcnt vmcnt(1)")
    for r in range(10):
        a(f"v_dot2_f32_bf16 v17, {v(LNX + r)}, {v(LNG + r)}, v17")
    half_sum([16, 17], [10, 11])
    a(f"v_mul_f32 v16, {hex(f2u(-1.0 / 640))}, v16")
    a(f"v_mul_f32 v17, {hex(f2u(-math.log2(math.e)))}, v17\nv_exp_f32 v31, v17")
    for r in range(0, 20, 2):
        a(f"v_pk_add_f32 {v(X + r, 2)}, {v(X + r, 2)}, v[16:17] op_sel_hi:[1,0]")
    for r in range(0, 20, 2):
        a(f"v_pk_fma_f32 v[18:19], {v(X + r, 2)}, {v(X + r, 2)}, v[18:19]")
    a("v_add_f32 v31, 1.0, v31\nv_add_f32 v18, v18, v19\nv_rcp_f32 v31, v31")
    half_sum([18], [10])
    a(f"v_mov_b32 v16, {hex(f2u(1e-5))}\nv_fmac_f32 v16, {hex(f2u(1.0 / 640))}, v18\nv_rsq_f32 v16, v16")
    a(f"s_lshl_b32 s3, s2, 7\ns_lshl_b32 s85, {sW}, 3\ns_add_u32 s85, s85, s3\ns_add_u32 s85, s85, {GATE}\nv_lshlrev_b32 v10, 2, v9")
    for r in range(0, 20, 2):
        a(f"v_pk_mul_f32 {v(X + r, 2)}, {v(X + r, 2)}, v[16:17] op_sel_hi:[1,0]")
    for r in range(10):
        a(f"v_cvt_pk_bf16_f32 {v(LNX + r)}, {v(X + 2 * r)}, {v(X + 2 * r + 1)}")
    a(f"ds_write_b128 v12, {v(LNX, 4)}\nds_write_b128 v12, {v(LNX + 4, 4)} offset:512\nds_write_b64 v13, {v(LNX + 8, 2)} offset:1024")
    a("s_mov_b32 exec_lo, 1\ns_mov_b32 exec_hi, 1")
    a(f"buffer_store_dword v31, v10, {sWS}, s85 offen sc1\ns_mov_b64 exec, -1")
    a("s_waitcnt lgkmcnt(0)")
    stamp(2)
    a("s_barrier")
    a(f"s_cmp_ge_u32 {sI}, 30\ns_cbranch_scc1 L_M_idle")
    a(f"s_cmp_ge_u32 {sCT}, 10\ns_cbranch_scc1 L_M_v")
    tile_loop("qk")
    stamp(3)
    a("v_lshl_add_u32 v10, v9, 14, v15")
    a(f"s_lshl_b32 s3, {sCT}, 1\ns_add_u32 s3, s3, s83\ns_lshl_b32 s3, s3, 18")
    a(f"s_lshl_b32 s85, {sTT}, 1\ns_add_u32 s85, s85, s84\ns_lshl_b32 s85, s85, 9\ns_add_u32 s85, s85, s3\ns_add_u32 s85, s85, {QK}")
    L = a.newlabel("noscale")
    a(f"s_cmp_ge_u32 {sCT}, 5\ns_cbranch_scc1 {L}")
    c = f2u(math.log2(math.e) / math.sqrt(20.0))
    a(f"s_mov_b32 s72, {c}\ns_mov_b32 s73, {c}")
    for cb, tb in [(0, 0), (0, 1), (1, 1), (1, 0)]:
        d = ACC + 16 * (2 * cb + tb)
        for r in range(0, 16, 2):
            a(f"v_pk_mul_f32 {v(d + r, 2)}, {v(d + r, 2)}, s[72:73]")
    a.label(L)
    for cb in range(2):
        for g in range(4):
            for tb in range(2):
                d = ACC + 16 * (2 * cb + tb) + 4 * g
                a(f"v_cvt_pk_bf16_f32 {v(d)}, {v(d)}, {v(d + 1)}\nv_cvt_pk_bf16_f32 {v(d + 1)}, {v(d + 2)}, {v(d + 3)}")
                a(f"buffer_store_dwordx2 {v(d, 2)}, v10, {sWS}, s85 offen offset:{256 * tb} sc1")
            a("s_add_u32 s85, s85, 32768")
    a("s_branch L_M_g1")
    a.label("L_M_v")
    tile_loop("v")
    stamp(3)
    a("v_mul_u32_u24 v10, 4352, v9\ns_lshl_b32 s3, s83, 10\nv_add3_u32 v10, v10, v14, s3")
    a(f"s_lshl_b32 s85, {sCT}, 5\ns_lshl_b32 s3, {sTT}, 1\ns_add_u32 s85, s85, s3\ns_add_u32 s85, s85, s84")
    a(f"s_mul_i32 s85, s85, {2 * 8704}\ns_add_u32 s85, s85, {VV - 10 * VCT}\ns_add_u32 s72, s85, 8704")
    for cb, tb in [(0, 0), (0, 1), (1, 1), (1, 0)]:
        for st in range(2):
            d = ACC + 16 * (2 * cb + tb) + 8 * st
            for r in range(4):
                a(f"v_cvt_pk_bf16_f32 {v(d + r)}, {v(d + 2 * r)}, {v(d + 2 * r + 1)}")
            a(f"buffer_store_dwordx4 {v(d, 4)}, v10, {sWS}, {'s72' if tb else 's85'} offen offset:{2176 * st + 512 * cb} sc1")
    a(f"s_cmp_lg_u32 s83, 0\ns_cbranch_scc1 L_M_g1")
    a("v_lshrrev_b32 v11, 3, v1\nv_mul_u32_u24 v11, 2176, v11\nv_and_b32 v12, 7, v1\nv_lshl_add_u32 v11, v12, 4, v11")
    for r in range(4):
        a(f"v_mov_b32 v{16 + r}, 0x3f803f80")
    a(f"buffer_store_dwordx4 v[16:19], v11, {sWS}, s85 offen offset:2048 sc1")
    a.label("L_M_g1")
    mfma32k8(ACC2, 20, 22, "0")
    stamp(4)
    a("s_barrier")
    tile_loop("g1")
    stamp(5)
    a(f"s_mul_i32 s16, {sFT}, 5\ns_add_u32 s16, s16, {sDT}\ns_lshl_b32 s16, s16, 2\nv_lshlrev_b32 v10, 4, v1")
    for k in (1, 3, 2):
        a(f"s_xor_b32 s3, {sKQ}, {k}\ns_add_u32 s3, s3, s16\ns_lshl_b32 s3, s3, 2\ns_add_u32 s3, s3, {sW}\ns_mul_i32 s3, s3, 12288\ns_add_u32 s3, s3, {PB + 4096 * (k - 1)}")
        for q in range(4):
            a(f"buffer_store_dwordx4 {v(ACC2 + 16 * k + 4 * q, 4)}, v10, {sWS}, s3 offen offset:{1024 * q} sc1")
    a(f"s_add_u32 s17, s16, {sKQ}\ns_lshl_b32 s17, s17, 2\ns_add_u32 s17, s17, {sW}")
    a(f"s_lshl_b32 s85, s17, 6\ns_add_u32 s85, s85, {FLP}")
    a(f"s_lshl_b32 s3, s16, 2\ns_add_u32 s3, s3, {sW}\ns_lshl_b32 s3, s3, 6\ns_add_u32 s3, s3, {FLP}")
    a(f"s_setprio {OPT['gprio_v']}")
    a("v_and_b32 v11, 3, v1\nv_lshl_add_u32 v11, v11, 8, s3")
    a("s_waitcnt vmcnt(0)")
    set_flag("s85", 16)
    poll(11, 12, sleep=4)
    a(f"s_setprio {OPT['gprio_m']}")
    a(f"s_mul_i32 s3, s17, 12288\ns_add_u32 s3, s3, {PB}")
    for k in (1, 2, 3):
        for q in range(4):
            a(f"buffer_load_dwordx4 {v(ACC2 + 16 * k + 4 * q, 4)}, v10, {sWS}, s3 offen offset:{1024 * q} sc1")
        a("s_add_u32 s3, s3, 4096")
    a(f"s_waitcnt vmcnt(0)\ns_setprio {OPT['gprio_v']}")
    A0, T0 = ACC2, ACC2 + 16
    for k in (1, 2, 3):
        for r in range(0, 16, 2):
            a(f"v_pk_add_f32 {v(A0 + r, 2)}, {v(A0 + r, 2)}, {v(A0 + 16 * k + r, 2)}")
    c1 = -2.0 * math.sqrt(2.0 / math.pi) * math.log2(math.e)
    c2 = c1 * 0.044715
    a(f"s_mov_b32 s26, {hex(f2u(c2))}\ns_mov_b32 s27, {hex(f2u(c2))}\nv_mov_b32 v16, {hex(f2u(c1))}\nv_mov_b32 v17, {hex(f2u(c1))}")
    for r in range(0, 16, 2):
        a(f"v_pk_mul_f32 {v(T0 + r, 2)}, {v(A0 + r, 2)}, {v(A0 + r, 2)}")
    for r in range(0, 16, 2):
        a(f"v_pk_fma_f32 {v(T0 + r, 2)}, {v(T0 + r, 2)}, s[26:27], v[16:17]")
    for r in range(0, 16, 2):
        a(f"v_pk_mul_f32 {v(T0 + r, 2)}, {v(T0 + r, 2)}, {v(A0 + r, 2)}")
    for r in range(16):
        a(f"v_exp_f32 {v(T0 + r)}, {v(T0 + r)}")
    for r in range(0, 16, 2):
        a(f"v_pk_add_f32 {v(T0 + r, 2)}, {v(T0 + r, 2)}, 1.0 op_sel_hi:[1,0]")
    for r in range(16):
        a(f"v_rcp_f32 {v(T0 + r)}, {v(T0 + r)}")
    for r in range(0, 16, 2):
        a(f"v_pk_mul_f32 {v(A0 + r, 2)}, {v(A0 + r, 2)}, {v(T0 + r, 2)}")
    for r in range(8):
        a(f"v_cvt_pk_bf16_f32 {v(A0 + r)}, {v(A0 + 2 * r)}, {v(A0 + 2 * r + 1)}")
    a("v_mul_u32_u24 v10, 10240, v9\nv_add_u32 v10, v10, v14")
    a(f"s_mul_i32 s85, s24, 40960\ns_lshl_b32 s3, s25, 9\ns_add_u32 s85, s85, s3\ns_add_u32 s85, s85, {UU}\ns_add_u32 s3, s85, 20480")
    a(f"buffer_store_dwordx4 {v(A0, 4)}, v10, {sWS}, s85 offen sc1")
    a(f"buffer_store_dwordx4 {v(A0 + 4, 4)}, v10, {sWS}, s3 offen sc1")
    a(f"s_mul_i32 s85, s25, 48\ns_add_u32 s85, s85, s24\ns_lshl_b32 s85, s85, 4\ns_add_u32 s85, s85, {FLU}")
    a("s_waitcnt vmcnt(0)")
    set_flag("s85", 16)
    lds_wait(C_R, 4, vCN, 16)
    a("s_branch L_G2")
    a.label("L_M_idle")
    a(f"s_waitcnt vmcnt(0)\ns_barrier\ns_setprio {OPT['gprio_v']}")


def dma_group(vregs, srdn, soff, m0base, fl=""):
    a(f"s_mov_b32 m0, {m0base}" if not isinstance(m0base, tuple) else f"s_add_u32 m0, {m0base[0]}, {m0base[1]}")
    for j, r in enumerate(vregs):
        a(f"buffer_load_dwordx4 {v(r)}, {srdn}, {soff} offen offset:{1024 * j} {fl} lds")


OO = lambda c: 128 + 16 * c
SS = lambda b: 192 + 16 * b
PP = 224
Q1 = lambda c: 32 + 6 * c
Q2 = lambda c: 36 + 6 * c
MM = lambda c: 56 + c
vK1, vK2, vV = 60, 61, 62
KB = lambda b: 64 + 14 * b
sK, sKb, sV, sLOOP, sMODE, sH = "s16", "s17", "s18", "s19", "s20", "s21"
sQT = "s34"


def kv_loads(b, koff):
    B = KB(b)
    return [
        f"buffer_load_dwordx2 {v(B, 2)}, {v(vK1)}, {sWS}, {sK} offen offset:{koff} sc1",
        f"buffer_load_dwordx2 {v(B + 2, 2)}, {v(vK1)}, {sWS}, {sKb} offen offset:{koff} sc1",
        f"buffer_load_dword {v(B + 4)}, {v(vK2)}, {sWS}, {sK} offen offset:{koff} sc1",
        f"buffer_load_dwordx4 {v(B + 6, 4)}, {v(vV)}, {sWS}, {sV} offen sc1",
        f"buffer_load_dwordx4 {v(B + 10, 4)}, {v(vV)}, {sWS}, {sV} offen offset:2176 sc1",
    ]


def maxbody():
    T = [192, 208, 224, 8]
    for c in range(4):
        mfma32(T[c], KB(0), Q1(c), "0")
        mfma32k8(T[c], KB(0) + 4, Q2(c))
    for c in range(4):
        for r in range(0, 16, 2):
            a(f"v_max3_f32 {v(MM(c))}, {v(MM(c))}, {v(T[c] + r)}, {v(T[c] + r + 1)}")


def att_slot(tl, extra):
    c, b = tl & 3, (tl >> 2) & 3
    cn, bn = (tl + 1) & 3, ((tl + 1) >> 2) & 3
    cp, bp = (tl - 1) & 3, ((tl - 1) >> 2) & 3
    S, Sn = SS(tl & 1), SS((tl + 1) & 1)
    ms = [
        lambda: mfma32(Sn, KB(bn), Q1(cn), "0"),
        lambda: mfma32k8(Sn, KB(bn) + 4, Q2(cn)),
        lambda: mfma32(OO(cp), KB(bp) + 10, PP + 4),
        lambda: mfma32(OO(c), KB(b) + 6, PP),
    ]
    for q in range(4):
        ms[q]()
        for x in extra.get(q, []):
            a(x)
        for r in range(4):
            a(f"v_exp_f32 {v(S + 4 * q + r)}, {v(S + 4 * q + r)}")
        for r in range(2):
            a(f"v_cvt_pk_bf16_f32 {v(PP + 2 * q + r)}, {v(S + 4 * q + 2 * r)}, {v(S + 4 * q + 2 * r + 1)}")


def att_setup_a():
    a(f"s_lshl_b32 {sH}, {sXCD}, 2\ns_lshr_b32 s3, {sI}, 3\ns_add_u32 {sH}, {sH}, s3")
    a(f"s_and_b32 {sQT}, {sI}, 7\ns_lshl_b32 {sQT}, {sQT}, 1\ns_add_u32 {sQT}, {sQT}, s84")
    a(f"s_mul_i32 s23, {sH}, 20\ns_add_u32 s35, s23, 19\ns_lshr_b32 s33, s23, 7\ns_lshr_b32 s35, s35, 7")
    a("v_bfe_u32 v22, v1, 3, 1\ns_sub_u32 s3, s35, s33\nv_mul_u32_u24 v22, s3, v22\nv_add_u32 v22, s33, v22")
    a("v_lshrrev_b32 v23, 4, v1\nv_add_u32 v23, 1, v23\nv_mul_u32_u24 v23, 5, v23")
    a("v_and_b32 v24, 7, v1\ns_lshl_b32 s3, s83, 3\nv_add_u32 v24, s3, v24")
    a(f"v_cmp_gt_u32 vcc, 32, v1\nv_mov_b32 v25, {sQT}")
    a("v_cndmask_b32 v23, 0, v23, vcc\nv_cndmask_b32 v24, v25, v24, vcc")
    a("v_add_u32 v22, v22, v23\nv_lshl_add_u32 v22, v22, 4, v24\nv_lshlrev_b32 v22, 4, v22")
    a(f"v_add_u32 v31, {FLQ}, v22")
    a("v_and_b32 v20, 31, v1\nv_lshrrev_b32 v21, 5, v1")
    a(f"v_lshlrev_b32 {v(vK1)}, 14, v21\nv_lshl_add_u32 {v(vK1)}, v20, 3, {v(vK1)}")
    a(f"v_lshlrev_b32 {v(vK2)}, 2, v21\nv_lshl_add_u32 {v(vK2)}, v20, 3, {v(vK2)}\nv_add_u32 {v(vK2)}, 0x10000, {v(vK2)}")
    a("v_add_u32 v22, s23, v20\nv_lshrrev_b32 v23, 7, v22\nv_and_b32 v22, 127, v22")
    a("v_cmp_gt_u32 vcc, 20, v20\nv_mov_b32 v24, s33\nv_mov_b32 v25, 128")
    a("v_cndmask_b32 v23, v24, v23, vcc\nv_cndmask_b32 v22, v25, v22, vcc")
    a(f"v_mul_u32_u24 v23, {VCT}, v23\nv_lshl_add_u32 v23, v22, 4, v23\nv_mul_u32_u24 v24, 4352, v21\nv_add_u32 {v(vV)}, v23, v24")
    if OPT.get("zrows", 1):
        a(f"s_mov_b32 s30, {hex(0xeef00000)}\ns_mov_b32 s31, {hex(0xeef00000)}\nv_mov_b32 v24, 0x80000000")
        a(f"v_cndmask_b32 {v(vV)}, {v(vV)}, v24, s[30:31]")
    a(f"s_mul_i32 s26, {sH}, {5 * 16384}\ns_add_u32 s26, s26, {QK}")
    a(f"s_lshl_b32 s3, s83, 13\ns_add_u32 s27, s26, s3\ns_add_u32 s27, s27, {160 * 16384}")
    a(f"s_lshl_b32 s3, {sQT}, 10\ns_add_u32 s26, s26, s3")
    a(f"s_mul_i32 s28, s83, {32 * 8704}\ns_add_u32 s28, s28, {VV}")
    a(f"s_mov_b32 {sMODE}, {OPT['force_fb'] & 1}")


def att_setup_b():
    for b in range(4):
        a(f"v_mov_b32 {v(KB(b) + 5)}, 0x3f803f80")
    for r in range(64):
        a(f"v_mov_b32 {v(OO(0) + r)}, 0")


def t_att():
    a.label("L_T_att")
    a(f"s_setprio {OPT['aprio']}")
    poll(31, 28, sleep=1)
    stamp(4)
    a("s_lshl_b32 s3, s83, 9\ns_add_u32 s29, s26, s3\ns_xor_b32 s3, s3, 512\ns_add_u32 s30, s26, s3")
    a("s_add_u32 s31, s29, 32768\ns_add_u32 s32, s30, 32768")
    for c in range(4):
        s0, s1 = ("s29", "s31") if c < 2 else ("s30", "s32")
        off = 256 * (c & 1)
        a(f"buffer_load_dwordx2 {v(Q1(c), 2)}, {v(vK1)}, {sWS}, {s0} offen offset:{off} sc1")
        a(f"buffer_load_dwordx2 {v(Q1(c) + 2, 2)}, {v(vK1)}, {sWS}, {s1} offen offset:{off} sc1")
        a(f"buffer_load_dword {v(Q2(c))}, {v(vK2)}, {sWS}, {s0} offen offset:{off} sc1")
    a.label("L_att_start")
    for c in range(4):
        a(f"v_mov_b32 {v(Q2(c) + 1)}, 0\nv_mov_b32 {v(MM(c))}, 0xff800000")
    a(f"s_cmp_eq_u32 {sMODE}, 0\ns_cbranch_scc1 L_att_go")
    a(f"s_add_u32 {sK}, s27, {31 * 256}")
    a.label("L_att_max")
    a(f"s_add_u32 {sKb}, {sK}, 32768")
    for x in kv_loads(0, 0)[:3]:
        a(x)
    a("s_waitcnt vmcnt(0)")
    maxbody()
    a(f"s_sub_u32 {sK}, {sK}, 256\ns_cmp_lg_u32 {sK}, s27\ns_cbranch_scc1 L_att_max")
    for r in range(64):
        a(f"v_mov_b32 {v(OO(0) + r)}, 0")
    a.label("L_att_go")
    a(f"s_mov_b32 {sK}, s27\ns_add_u32 {sKb}, s27, 32768\ns_mov_b32 {sV}, s28")
    for b in range(3):
        for x in kv_loads(b, 256 * b):
            a(x)
        a(f"s_add_u32 {sV}, {sV}, 8704")
    for r in range(4):
        a(f"v_mov_b32 {v(KB(3) + 10 + r)}, 0")
    a("s_waitcnt vmcnt(12)")
    stamp(5)
    maxbody()
    a("v_cmp_gt_u32 vcc, 32, v1")
    for c in range(4):
        a(f"v_mov_b32 v{2 + c}, {v(MM(c))}")
    for c in range(4):
        a(f"v_permlane32_swap_b32 v{2 + c}, {v(MM(c))}")
    for c in range(4):
        a(f"v_max_f32 {v(MM(c))}, v{2 + c}, {v(MM(c))}")
    for c in range(4):
        a(f"v_and_b32 v{2 + c}, 0xffff0000, {v(MM(c))}")
    for c in range(4):
        a(f"v_sub_f32 v{8 + c}, {v(MM(c))}, v{2 + c}")
    for c in range(4):
        a(f"v_and_b32 v{12 + c}, 0xffff0000, v{8 + c}")
    for c in range(4):
        a(f"v_sub_f32 v{8 + c}, v{8 + c}, v{12 + c}")
    for c in range(4):
        a(f"v_cvt_pk_bf16_f32 v{2 + c}, -v{2 + c}, -v{12 + c}")
    for c in range(4):
        a(f"v_cvt_pk_bf16_f32 v{8 + c}, -v{8 + c}, 0")
    for c in range(4):
        a(f"v_cndmask_b32 {v(Q2(c) + 1)}, v{8 + c}, v{2 + c}, vcc")
    mfma32(SS(0), KB(0), Q1(0), "0")
    mfma32k8(SS(0), KB(0) + 4, Q2(0))
    for r in range(4):
        a(f"v_mov_b32 {v(PP + 4 + r)}, 0")
    a(f"s_mov_b32 {sLOOP}, 8\ns_waitcnt vmcnt(10)\ns_nop 7")
    stamp(6)
    cstamp(10)
    a(".p2align 6")
    a(";@hot")
    a.label("L_att_loop")
    for tl in range(16):
        j, c = tl >> 2, tl & 3
        ld = kv_loads((j + 3) & 3, 256 * (j + 3))
        if OPT.get("x_noload"):
            ld = ["s_nop 0"] * 5
        extra = {}
        if c == 0:
            extra = {0: [ld[0]], 2: [ld[1]], 3: [ld[2]]}
        elif c == 1:
            extra = {0: [ld[3]], 2: [ld[4]], 3: [f"s_add_u32 {sV}, {sV}, 8704"]}
        elif c == 2:
            extra = {3: ["s_waitcnt vmcnt(10)"]}
            if j == 3:
                extra[0] = [f"s_add_u32 {sK}, {sK}, 1024"]
                extra[2] = [f"s_add_u32 {sKb}, {sKb}, 1024"]
        elif c == 3 and j == 3:
            extra = {0: [f"s_sub_u32 {sLOOP}, {sLOOP}, 1"], 2: [f"s_cmp_lg_u32 {sLOOP}, 0"]}
        att_slot(tl, extra)
    a("s_cbranch_scc1 L_att_loop")
    a(";@endhot")
    mfma32(OO(3), KB(3) + 10, PP + 4)
    stamp(7)
    cstamp(11)
    a("s_waitcnt vmcnt(0)")
    a(f"v_max3_f32 v2, {v(OO(0) + 12)}, {v(OO(1) + 12)}, {v(OO(2) + 12)}\nv_max_f32 v2, v2, {v(OO(3) + 12)}")
    a(f"v_cmp_lt_f32 vcc, {hex(f2u(2.0 ** 30))}, v2\ns_cbranch_vccz L_att_ok")
    if OPT.get("x_noload"):
        a("s_branch L_att_ok")
    a(f"s_cmp_lg_u32 {sMODE}, 0\ns_cbranch_scc1 L_att_ok\ns_mov_b32 {sMODE}, 1\ns_branch L_att_start")
    a.label("L_att_ok")
    lds_arrive(C_TD, vCN, vONE)
    a(f"s_mul_i32 s3, {sW}, 7168\ns_add_u32 s3, s3, {XCH}\nv_lshl_add_u32 v2, v1, 4, s3\nv_lshl_add_u32 v3, v1, 3, s3")
    a(f"s_xor_b32 s29, {sW}, 1\ns_mul_i32 s29, s29, 7168\ns_add_u32 s29, s29, {XCH}\nv_lshl_add_u32 v4, v1, 4, s29\nv_lshl_add_u32 v5, v1, 3, s29")
    for k in range(2):
        a(f"v_mov_b32 {v(OO(2 + k) + 13)}, {v(MM(2 + k))}")
        for q in range(3):
            a(f"ds_write_b128 v2, {v(OO(2 + k) + 4 * q, 4)} offset:{3584 * k + 1024 * q}")
        a(f"ds_write_b64 v3, {v(OO(2 + k) + 12, 2)} offset:{3584 * k + 3072}")
    a(f"s_lshl_b32 s3, s84, 2\nv_add_u32 v6, s3, {v(vCN)}")
    lds_arrive(C_O0, 6, vONE)
    a("v_and_b32 v8, 31, v1\nv_lshrrev_b32 v9, 5, v1")
    a("v_lshlrev_b32 v10, 15, v9\nv_lshl_add_u32 v10, v8, 4, v10")
    a("v_lshlrev_b32 v11, 31, v9\nv_lshl_add_u32 v11, v8, 3, v11")
    a(f"s_lshl_b32 s30, {sQT}, 1\ns_add_u32 s30, s30, s83")
    a(f"s_lshl_b32 s31, {sH}, 16\ns_lshl_b32 s3, s30, 10\ns_add_u32 s31, s31, s3\ns_add_u32 s31, s31, {O1}")
    a(f"s_lshl_b32 s32, {sH}, 14\ns_lshl_b32 s3, s30, 9\ns_add_u32 s32, s32, s3\ns_add_u32 s32, s32, {O2}")
    a(f"s_lshl_b32 s33, s30, 5\ns_add_u32 s33, s33, {sH}\ns_lshl_b32 s33, s33, 7\ns_add_u32 s33, s33, {FLO}")
    lds_wait(C_O0, 2, 6, 7, sleep=0)
    R = lambda k: 64 + 16 * k
    for k in range(2):
        a(f"ds_read_b64 {v(R(k) + 12, 2)}, v5 offset:{3584 * k + 3072}")
    for k in range(2):
        for q in range(3):
            a(f"ds_read_b128 {v(R(k) + 4 * q, 4)}, v4 offset:{3584 * k + 1024 * q}")
    a("s_waitcnt lgkmcnt(6)")
    for k in range(2):
        t = 12 + 4 * k
        a(f"v_max_f32 v{t}, {v(MM(k))}, {v(R(k) + 13)}")
        a(f"v_sub_f32 v{t + 2}, {v(R(k) + 13)}, v{t}\nv_sub_f32 v{t}, {v(MM(k))}, v{t}")
        a(f"v_exp_f32 v{t}, v{t}\nv_exp_f32 v{t + 2}, v{t + 2}")
    for k in range(2):
        t = 12 + 4 * k
        a(f"v_mul_f32 v{t + 1}, v{t}, {v(OO(k) + 12)}\nv_fma_f32 v{t + 1}, v{t + 2}, {v(R(k) + 12)}, v{t + 1}")
        a(f"v_rcp_f32 v{t + 1}, v{t + 1}")
    for k in range(2):
        t = 12 + 4 * k
        a(f"v_mul_f32 v{t}, v{t}, v{t + 1}\nv_mul_f32 v{t + 2}, v{t + 2}, v{t + 1}")
    for k in range(2):
        t = 12 + 4 * k
        a(f"s_waitcnt lgkmcnt({3 * (1 - k)})")
        for r in range(0, 12, 2):
            a(f"v_pk_mul_f32 {v(OO(k) + r, 2)}, {v(OO(k) + r, 2)}, {v(t, 2)} op_sel_hi:[1,0]")
        for r in range(0, 12, 2):
            a(f"v_pk_fma_f32 {v(OO(k) + r, 2)}, {v(R(k) + r, 2)}, {v(t + 2, 2)}, {v(OO(k) + r, 2)} op_sel_hi:[1,0,1]")
        for r in range(6):
            a(f"v_cvt_pk_bf16_f32 {v(OO(k) + r)}, {v(OO(k) + 2 * r)}, {v(OO(k) + 2 * r + 1)}")
        a(f"buffer_store_dwordx4 {v(OO(k), 4)}, v10, {sWS}, s31 offen offset:{512 * k} sc1")
        a(f"buffer_store_dwordx2 {v(OO(k) + 4, 2)}, v11, {sWS}, s32 offen offset:{256 * k} sc1")
    stamp(8)
    a("s_waitcnt vmcnt(0)")
    set_flag("s33", 16)
    stamp(9)
    dump_stamps()
    a("s_endpgm")


def g_gemm2():
    a.label("L_G2")
    stamp(6)
    GA = lambda sb, blk: 64 + 20 * sb + 4 * blk
    UB = lambda slot, blk: 144 + 20 * slot + 4 * blk
    WF = lambda sb: 32 + 4 * sb
    vD = [2, 3, 4, 5]
    vR = [6, 7, 8, 9]
    vU = 30
    sSB, sDB, sWOFF, sUOFF, sM0 = "s16", "s17", "s18", "s19", "s23"
    a(f"s_lshl_b32 {sSB}, {sXCD}, 2\ns_lshr_b32 s3, {sI}, 3\ns_add_u32 {sSB}, {sSB}, s3\ns_and_b32 {sDB}, {sI}, 7")
    a("v_lshrrev_b32 v10, 3, v1\nv_lshlrev_b32 v10, 12, v10")
    a("v_lshrrev_b32 v26, 4, v1\nv_lshlrev_b32 v11, 1, v26\nv_and_b32 v12, 7, v1\nv_xor_b32 v11, v11, v12\nv_lshl_add_u32 v10, v11, 4, v10")
    for j in range(4):
        a(f"v_add_u32 {v(vD[j])}, {j * (8 * 4096 - 1024)}, v10")
    a(f"s_mul_i32 {sWOFF}, {sW}, {384 * 4096}\ns_lshl_b32 s3, {sSB}, 7\ns_add_u32 {sWOFF}, {sWOFF}, s3")
    a(f"s_lshl_b32 {sM0}, {sW}, 14\ns_add_u32 {sM0}, {sM0}, {RINGB}")
    a("v_bfe_u32 v10, v1, 2, 3")
    a("v_lshrrev_b32 v11, 5, v1\nv_lshl_add_u32 v11, v11, 4, v10\nv_lshlrev_b32 v11, 7, v11")
    a(f"v_and_b32 v12, 3, v1\nv_lshl_add_u32 v11, v12, 3, v11\nv_add_u32 v11, {sM0}, v11")
    a(f"v_lshrrev_b32 v10, 1, v10\nv_xor_b32 v10, {sW}, v10")
    for sb in range(4):
        a(f"v_xor_b32 v12, {sb}, v10\nv_lshl_add_u32 {v(vR[sb])}, v12, 5, v11")
    a(f"v_mul_u32_u24 v10, 10240, v26\nv_and_b32 v27, 15, v1\nv_lshl_add_u32 {v(vU)}, v27, 4, v10")
    a(f"s_mul_i32 {sUOFF}, {sW}, {12 * 40960}\ns_mul_i32 s3, {sDB}, 1280\ns_add_u32 {sUOFF}, {sUOFF}, s3\ns_add_u32 {sUOFF}, {sUOFF}, {UU}")

    def issue_w(slot):
        dma_group(vD, sW2, sWOFF, (sM0, 4096 * slot), OPT["ntw2"])
        a(f"s_add_u32 {sWOFF}, {sWOFF}, {32 * 4096}")

    def issue_u(slot):
        for blk in range(5):
            a(f"buffer_load_dwordx4 {v(UB(slot, blk), 4)}, {v(vU)}, {sWS}, {sUOFF} offen offset:{256 * blk} sc1")
        a(f"s_add_u32 {sUOFF}, {sUOFF}, 40960")

    a(f"s_setprio {OPT['gprio_m']}")
    for s in range(3):
        issue_w(s)
    a(f"s_setprio {OPT['gprio_v']}")
    a("v_mul_u32_u24 v10, 43, v1\nv_lshrrev_b32 v10, 9, v10\nv_mul_u32_u24 v11, 12, v10\nv_sub_u32 v11, v1, v11\nv_min_u32 v10, 2, v10")
    a(f"s_mul_i32 s3, {sDB}, 80\ns_lshr_b32 s3, s3, 5\nv_add_u32 v10, s3, v10\nv_mul_u32_u24 v10, 48, v10")
    a(f"s_mul_i32 s3, {sW}, 12\nv_add3_u32 v10, v10, v11, s3\nv_lshlrev_b32 v10, 4, v10\nv_add_u32 v10, {FLU}, v10")
    poll(10, 12, sleep=8)
    stamp(7)
    a(f"s_setprio {OPT['gprio_m']}")
    LA = OPT.get("g2la", 3)
    for s in range(LA):
        issue_u(s)

    def stage_ops(slot, with_w):
        ops = []
        if with_w and OPT.get("x_now2"):
            ops += [[f"buffer_load_dwordx4 v[48:51], {v(vU)}, {sWS}, {sUOFF} offen sc1"]] * 4
        elif with_w:
            ops.append([f"s_add_u32 m0, {sM0}, {4096 * slot}", "s_nop 0", f"buffer_load_dwordx4 {v(vD[0])}, {sW2}, {sWOFF} offen {OPT['ntw2']} lds"])
            for j in range(1, 4):
                ops.append([f"buffer_load_dwordx4 {v(vD[j])}, {sW2}, {sWOFF} offen offset:{1024 * j} {OPT['ntw2']} lds"])
            ops[-1].append(f"s_add_u32 {sWOFF}, {sWOFF}, {32 * 4096}")
        for blk in range(5):
            ops.append([f"buffer_load_dwordx4 {v(UB(slot, blk), 4)}, {v(vU)}, {sWS}, {sUOFF} offen offset:{256 * blk} sc1"])
        ops[-1].append(f"s_add_u32 {sUOFF}, {sUOFF}, 40960")
        return ops

    nops = lambda st: 0 if st >= 12 else (5 if st < 3 else 9)
    for s in range(12 if not OPT.get("x_nog2") else 0):
        slot = s % 4
        n = sum(nops(st) for st in range(s + 1, s + LA))
        a(f"s_waitcnt vmcnt({n})")
        for sb in range(4):
            for p in range(2):
                a(f"ds_read_b64_tr_b16 {v(WF(sb) + 2 * p, 2)}, {v(vR[sb])} offset:{4096 * slot + 1024 * p}")
        ops = stage_ops((s + LA) % 4, s + LA >= 3) if s + LA < 12 else []
        if not OPT.get("g2spread"):
            for o in ops:
                for x in o:
                    a(x)
            ops = []
        k = 0
        for sb in range(4):
            a(f"s_waitcnt lgkmcnt({2 * (3 - sb)})")
            for blk in range(5):
                if not OPT.get("x_nomfma"):
                    mfma16(GA(sb, blk), UB(slot, blk), WF(sb), "0" if s == 0 else None)
                k += 1
                if k % 2 == 0 and ops:
                    for x in ops.pop(0):
                        a(x)
                    if OPT.get("g2sleep"):
                        a(f"s_sleep {OPT['g2sleep']}")
        assert not ops
    stamp(8)
    a(f"s_setprio {OPT['gprio_v']}")
    a(f"s_lshl_b32 s24, {sSB}, 2\ns_add_u32 s24, s24, {sW}")
    a(f"v_lshrrev_b32 v10, 3, v27\nv_lshlrev_b32 v10, 7, v10\nv_and_b32 v11, 7, v27\nv_lshl_add_u32 v10, v11, 2, v10")
    a(f"s_lshl_b32 s3, s24, 8\ns_add_u32 s3, s3, {GATE}\nbuffer_load_dword v20, v10, {sWS}, s3 offen sc1")
    a(f"v_lshlrev_b32 v10, 1, v27\ns_lshl_b32 s3, s24, 5\nbuffer_load_ushort v22, v10, {sB2}, s3 offen")
    a(f"v_lshlrev_b32 v10, 4, v1\nv_add_u32 v11, {sM0}, v10")
    for k in (1, 2, 3):
        for q in range(5):
            a(f"ds_write_b128 v11, {v(GA(k, q), 4)} offset:{5120 * (k - 1) + 1024 * q}")
    lds_arrive(C_G2, vCN, vONE)
    for k in (1, 2, 3):
        a(f"s_xor_b32 s3, {sW}, {k}\ns_lshl_b32 s3, s3, 14\ns_add_u32 s3, s3, {RINGB}\nv_add_u32 v{15 + k}, s3, v10")
    lds_wait(C_G2, 4, vCN, 12)
    for k in (1, 2, 3):
        for q in range(5):
            a(f"ds_read_b128 {v(GA(k, q), 4)}, v{15 + k} offset:{5120 * (k - 1) + 1024 * q}")
    a("s_waitcnt lgkmcnt(0)")
    lds_arrive(C_G3, vCN, vONE)
    for k in (1, 2, 3):
        for r in range(0, 20, 2):
            a(f"v_pk_add_f32 {v(64 + r, 2)}, {v(64 + r, 2)}, {v(64 + 20 * k + r, 2)}")
    a("s_waitcnt vmcnt(0)\nv_lshlrev_b32 v22, 16, v22\nv_sub_f32 v24, 1.0, v20")
    for r in range(0, 20, 2):
        a(f"v_pk_add_f32 {v(64 + r, 2)}, {v(64 + r, 2)}, v[22:23] op_sel_hi:[1,0]")
    for r in range(0, 20, 2):
        a(f"v_pk_mul_f32 {v(64 + r, 2)}, {v(64 + r, 2)}, v[24:25] op_sel_hi:[1,0]")
    vO = [2, 3, 4, 5, 6]
    for j in range(5):
        a(f"v_add_u32 v10, {64 * j}, v1\nv_mul_u32_u24 v11, 205, v10\nv_lshrrev_b32 v11, 11, v11")
        a(f"v_mul_u32_u24 v11, {1280 - 160}, v11\nv_lshl_add_u32 {v(vO[j])}, v10, 4, v11")
        if j in (1, 2, 3):
            a(f"v_subrev_u32 {v(vO[j])}, {1024 * j}, {v(vO[j])}")
    a(f"s_mul_i32 {sWOFF}, {sW}, {160 * 1280}\ns_mul_i32 s3, {sDB}, 160\ns_add_u32 {sWOFF}, {sWOFF}, s3\ns_mul_i32 {sM0}, {sW}, 25600")
    lds_wait(C_G3, 4, vCN, 12)
    a(f"s_setprio {OPT['gprio_m']}")
    for g in range(5 if not OPT.get("x_nowo") else 0):
        dma_group(vO[:4], sWO, sWOFF, (sM0, 5120 * g), OPT["ntwo"])
        dma_group(vO[4:], sWO, sWOFF, (sM0, 5120 * g + 4096), OPT["ntwo"])
        a(f"s_add_u32 {sWOFF}, {sWOFF}, {32 * 1280}")
        if OPT.get("wowait", 1):
            a("s_waitcnt vmcnt(2)")
    a(f"s_setprio {OPT['gprio_v']}")
    vA1, vA1b, vA2, vA2b = 6, 7, 8, 9
    a("v_bfe_u32 v10, v1, 2, 3\nv_lshrrev_b32 v11, 5, v1\nv_mul_u32_u24 v11, 20, v11\nv_add_u32 v10, v10, v11\nv_mul_u32_u24 v10, 160, v10")
    a("v_and_b32 v12, 3, v1")
    a("s_waitcnt vmcnt(0)")
    lds_arrive(C_G4, vCN, vONE)
    a(f"v_lshl_add_u32 {v(vA1)}, v12, 3, v10\nv_add_u32 {v(vA1b)}, 51200, {v(vA1)}")
    a("v_bfe_u32 v10, v1, 2, 2\nv_mul_u32_u24 v11, 20, v26\nv_add3_u32 v10, v10, v11, 16\nv_mul_u32_u24 v10, 160, v10")
    a(f"v_lshl_add_u32 {v(vA2)}, v12, 3, v10\nv_add_u32 {v(vA2b)}, 51200, {v(vA2)}")
    vO1, vO2 = 2, 3
    a(f"v_lshlrev_b32 v10, 15, v26\nv_lshl_add_u32 {v(vO1)}, v27, 4, v10")
    a(f"v_lshlrev_b32 v10, 14, v26\nv_lshl_add_u32 {v(vO2)}, v27, 3, v10")
    a(f"s_lshl_b32 s26, s24, 8\ns_add_u32 s26, s26, {O1}\ns_lshl_b32 s27, s24, 7\ns_add_u32 s27, s27, {O2}")
    a(f"v_mul_u32_u24 v4, 1280, v27\nv_lshl_add_u32 v4, v26, 3, v4")
    a(f"s_mul_i32 s28, s24, {16 * 1280}\ns_mul_i32 s3, {sDB}, 160\ns_add_u32 s28, s28, s3")
    a(f"v_and_b32 v10, 31, v1\ns_lshl_b32 s3, {sSB}, 12\ns_add_u32 s3, s3, {FLO}\nv_lshl_add_u32 v5, v10, 7, s3")
    AA = lambda blk: 84 + 4 * blk
    OF = lambda t: 104 + 4 * t
    WB = lambda buf, blk: 184 + 20 * buf + 4 * blk

    def wo_reads(t):
        out = []
        for blk in range(5):
            for p in range(2):
                if t < 16:
                    off = (40 * t + 8 * p) * 160 + 32 * blk
                    base = vA1
                    if off >= 51200:
                        off -= 51200
                        base = vA1b
                else:
                    off = (160 * (t - 16) + 80 * p) * 160 + 32 * blk
                    base = vA2
                    if off >= 51200:
                        off -= 51200
                        base = vA2b
                out.append(f"ds_read_b64_tr_b16 {v(WB(t % 3, blk) + 2 * p, 2)}, {v(base)} offset:{off}")
        return out

    lds_wait(C_G4, 4, vCN, 12)
    for t in range(2):
        for x in wo_reads(t):
            a(x)
    stamp(9)
    lds_wait(C_TD, 4, vCN, 12, sleep=8)
    poll(5, 10, sleep=OPT.get('osleep', 1))
    stamp(10)
    a("s_setprio 3")
    for t in range(16):
        a(f"buffer_load_dwordx4 {v(OF(t), 4)}, {v(vO1)}, {sWS}, s26 offen sc1\ns_add_u32 s26, s26, 0x20000")
    for t in range(4):
        for p in range(2):
            a(f"buffer_load_dwordx2 {v(OF(16 + t) + 2 * p, 2)}, {v(vO2)}, {sWS}, s27 offen sc1\ns_add_u32 s27, s27, 0x10000")
    for t in range(20):
        nv = 23 - t if t < 16 else 2 * (19 - t)
        rd = wo_reads(t + 2) if t + 2 < 20 else []
        nl = 10 if (0 < t < 19) else 0
        a(f"s_waitcnt vmcnt({nv}) lgkmcnt({nl})")
        for blk in range(5):
            mfma16(AA(blk), WB(t % 3, blk), OF(t), "0" if t == 0 else None)
            for x in rd[2 * blk:2 * blk + 2]:
                a(x)
    for blk in range(5):
        for r in (0, 2):
            a(f"v_pk_fma_f32 {v(64 + 4 * blk + r, 2)}, {v(AA(blk) + r, 2)}, v[20:21], {v(64 + 4 * blk + r, 2)} op_sel_hi:[1,0,1]")
        d = 64 + 4 * blk
        a(f"v_cvt_pk_bf16_f32 {v(d)}, {v(d)}, {v(d + 1)}\nv_cvt_pk_bf16_f32 {v(d + 1)}, {v(d + 2)}, {v(d + 3)}")
        a(f"buffer_store_dwordx2 {v(d, 2)}, v4, {sOUT}, s28 offen offset:{32 * blk}")
    stamp(11)
    L = a.newlabel("noe")
    a(f"s_or_b32 s3, s2, {sW}\ns_cmp_lg_u32 s3, 0\ns_cbranch_scc1 {L}\ns_mov_b32 s85, {WS_E}")
    set_flag("s85", 16)
    a.label(L)
    dump_stamps()
    a.label("L_end")
    a("s_endpgm")


entry()
t_front()
t_att()
ROLE[0] = "M"
m_front()
g_gemm2()

lines = [l.replace("CODE_BYTES", "0x8000") for l in a.lines]
lines = fix_hazards(lines, verbose=bool(OPT.get("v")))
lines = fix_align(lines, verbose=bool(OPT.get("v")))
from asmlib import sizes_of
total = sum(sizes_of(lines)) + 64
code_bytes = total // 128 * 128 - 256
lines = [l.replace("s_mov_b32 s70, 0x8000", f"s_mov_b32 s70, {hex(code_bytes)}") for l in lines]

ref = open(os.path.join(os.path.dirname(os.path.abspath(__file__)), "header.txt")).read()
out = ref
out += f"; @launch grid=(256,1,1) block=(512,1,1) lds={LDS_SIZE}\n"
out += f'.amdgcn_target "amdgcn-amd-amdhsa--gfx950"\n.text\n.globl {NAME}_kernel\n.p2align 8\n.type {NAME}_kernel,@function\n{NAME}_kernel:\n'
for l in lines:
    if l.startswith(";@"):
        continue
    out += (l if l.endswith(":") else "    " + l) + "\n"
out += f""".section .rodata,"a"
.p2align 6
.amdhsa_kernel {NAME}_kernel
  .amdhsa_next_free_vgpr 256
  .amdhsa_next_free_sgpr 102
  .amdhsa_accum_offset 256
  .amdhsa_group_segment_fixed_size 0
  .amdhsa_kernarg_size 96
  .amdhsa_user_sgpr_count 2
  .amdhsa_user_sgpr_kernarg_segment_ptr 1
  .amdhsa_system_sgpr_workgroup_id_x 1
.end_amdhsa_kernel
"""
open(sys.argv[1], "w").write(out)
print("code bytes", total, "lds", LDS_SIZE, "ws_end", hex(WS_END))
```

```python
import sys, os, struct, math
sys.path.insert(0, os.path.dirname(os.path.abspath(__file__)))
from asmlib import Asm, fix_hazards, fix_align

NAME = "gated_mix__mha_block__mixer_token_mlp__prompt"
OPT = dict(rot3=1, waitts=1, g2hold=6, tdsleep=4, gprio_w=0, outfl='', thr=3, pfw1=1, hold=1, npre=2, qb=14, rot=1, rot2=1, ntx="", ntw="", ntw1="", ntw2="", ntwo="", g2la=2, g2spread=1, osleep=1, aprio=1, gprio_v=3, gprio_m=0, stamps=0, pattern="even", spin=1 << 16, force_fb=0)
for a in sys.argv[2:]:
    k, v = a.split("=")
    OPT[k] = int(v) if v.lstrip("-").isdigit() else v


def f2u(x):
    return struct.unpack("<I", struct.pack("<f", x))[0]


WS_E = 0
FLH = 0x1000
FLQ = 0x2000
FLU = 0x4000
FLP = 0x8000
FLO = 0x18000
GATE = 0x38000
DBGT = 0x40000
QK = 0x90000
assert DBGT + 2048 * 64 <= QK
VV = QK + 320 * 16384
VCT = 64 * 8704
HT = VV + 5 * VCT
UU = HT + 256 * 10240
O1 = UU + 96 * 2 * 640 * 16
O2 = O1 + 32 * 2 * 2048 * 16
PB = O2 + 32 * 2048 * 8
WS_END = PB + 60 * 16 * 6144

RINGA = 0
RINGB = 65536
XCH = 131072
CNT = XCH + 4 * 7168
LDS_SIZE = CNT + 64
C_R, C_G2, C_G3, C_G4, C_O0, C_O1, C_TD = [4 * i for i in range(7)]

sX, sWQ, sWS = "s[4:7]", "s[8:11]", "s[12:15]"
sW1, sW2, sWO, sB1, sB2, sGW, sOUT, sCODE = ["s[%d:%d]" % (i, i + 3) for i in range(40, 72, 4)]
sNONCE = "s[74:75]"
sW8, sW, sXCD, sI = "s76", "s77", "s78", "s79"
sTT, sCT = "s80", "s81"
sFT, sDT, sKQ = "s36", "s37", "s22"
STAMP0 = 86

a = Asm()


def v(i, n=1):
    return f"v{i}" if n == 1 else f"v[{i}:{i + n - 1}]"


def srd(dst, lo, nbytes):
    d = int(dst[2:dst.index(":")])
    a(f"s_mov_b32 s{d}, s{lo}\ns_mov_b32 s{d + 1}, s{lo + 1}\ns_mov_b32 s{d + 2}, {nbytes}\ns_mov_b32 s{d + 3}, 0x20000")


ROLE = ["T"]


def stamp(i, diag=False):
    if OPT.get("diag") and ROLE[0] == "T" and not diag and i > 0:
        return
    if diag and not OPT.get("diag"):
        return
    if OPT["stamps"]:
        a(f"s_memrealtime s[100:101]\ns_waitcnt lgkmcnt(0)\ns_mov_b32 s{STAMP0 + i}, s100")


def cstamp(i):
    if OPT["stamps"] and not OPT.get("diag"):
        a(f"s_memtime s[100:101]\ns_waitcnt lgkmcnt(0)\ns_mov_b32 s{STAMP0 + i}, s100")


def probe_end():
    if OPT.get("probe") != ROLE[0]:
        return
    L, Ld = a.newlabel("pr"), a.newlabel("prd")
    if OPT.get("pwg", -1) >= 0:
        a(f"s_cmp_lg_u32 s2, {OPT['pwg']}\ns_cbranch_scc1 {Ld}")
    else:
        a(f"s_cmp_ge_u32 {sI}, 30\ns_cbranch_scc1 {Ld}")
    if OPT["pb"] >= 0:
        a(f"s_add_u32 s3, s{STAMP0 + OPT['pb']}, 10000")
    else:
        a(f"s_add_u32 s3, s98, 10000")
    a.label(L)
    a(f"s_sleep 1\ns_memrealtime s[100:101]\ns_waitcnt lgkmcnt(0)\ns_sub_u32 s82, s100, s3\ns_cmp_lt_i32 s82, 0\ns_cbranch_scc1 {L}")
    a.label(Ld)


def dump_stamps():
    probe_end()
    if OPT["stamps"] and not OPT.get("probe"):
        a(f"s_lshl_b32 s3, s2, 3\ns_add_u32 s3, s3, {sW8}\ns_lshl_b32 s3, s3, 6\ns_add_u32 s3, s3, {DBGT}")
        a("v_mov_b32 v2, 0")
        for q in range(3):
            for r in range(4):
                a(f"v_mov_b32 v{4 + r}, s{STAMP0 + 4 * q + r}")
            a(f"buffer_store_dwordx4 v[4:7], v2, {sWS}, s3 offen offset:{16 * q}")
            a("s_nop 1")


def lds_arrive(cnt, vC, vOne):
    a(f"s_mov_b64 exec, 1\nds_add_u32 {v(vC)}, {v(vOne)} offset:{cnt}\ns_mov_b64 exec, -1")


def lds_wait(cnt, n, vC, vT, sleep=1):
    L, Ld = a.newlabel("lw"), a.newlabel("lwd")
    a(f"s_mov_b32 s82, {OPT['spin'] * 4}")
    a.label(L)
    a(f"ds_read_b32 {v(vT)}, {v(vC)} offset:{cnt}\ns_waitcnt lgkmcnt(0)\nv_readfirstlane_b32 s3, {v(vT)}")
    a(f"s_cmp_ge_u32 s3, {n}\ns_cbranch_scc1 {Ld}")
    if sleep:
        a(f"s_sleep {sleep}")
    a(f"s_sub_u32 s82, s82, 1\ns_cmp_lg_u32 s82, 0\ns_cbranch_scc1 {L}")
    a.label(Ld)


def poll(vA, vT, sleep=2):
    L, Ld = a.newlabel("po"), a.newlabel("pod")
    a(f"s_mov_b32 s82, {OPT['spin']}")
    a.label(L)
    a(f"buffer_load_dwordx2 {v(vT, 2)}, {v(vA)}, {sWS}, 0 offen sc1\ns_waitcnt vmcnt(0)")
    a(f"v_cmp_ne_u64 vcc, {sNONCE}, {v(vT, 2)}\ns_cbranch_vccz {Ld}")
    if sleep:
        a(f"s_sleep {sleep}")
    a(f"s_sub_u32 s82, s82, 1\ns_cmp_lg_u32 s82, 0\ns_cbranch_scc1 {L}")
    a.label(Ld)


def set_flag(soff, vT):
    a(f"v_mov_b32 {v(vT)}, s74\nv_mov_b32 {v(vT + 1)}, s75\nv_mov_b32 {v(vT + 2)}, 0")
    a(f"s_mov_b64 exec, 1\nbuffer_store_dwordx2 {v(vT, 2)}, {v(vT + 2)}, {sWS}, {soff} offen sc1\ns_mov_b64 exec, -1")


def mfma32(d, x, y, c=None):
    a(f"v_mfma_f32_32x32x16_bf16 {v(d, 16)}, {v(x, 4)}, {v(y, 4)}, {v(d, 16) if c is None else c}")


def mfma32k8(d, x, y, c=None):
    a(f"v_mfma_f32_32x32x8_bf16 {v(d, 16)}, {v(x, 2)}, {v(y, 2)}, {v(d, 16) if c is None else c}")


def mfma16(d, x, y, c=None):
    a(f"v_mfma_f32_16x16x32_bf16 {v(d, 4)}, {v(x, 4)}, {v(y, 4)}, {v(d, 4) if c is None else c}")


vL = 1
vCN = 254
vONE = 255


LNX, LNG = 200, 210
NLP = 10


def build_ws_and_nonce_load():
    srd(sWS, 38, WS_END)
    a(f"s_load_dwordx2 s[72:73], s[38:39], {WS_E}")


def make_nonce():
    a("s_mul_i32 s74, s72, 1664525\ns_add_u32 s74, s74, 1013904223")
    a("s_mul_i32 s75, s73, 22695477\ns_add_u32 s75, s75, 0x3c6ef35f")


def g1_tile():
    a(f"s_mul_i32 s3, {sI}, 52\ns_lshr_b32 s3, s3, 8\ns_mul_i32 {sDT}, s3, 5\ns_sub_u32 {sDT}, {sI}, {sDT}")
    a(f"s_and_b32 {sFT}, {sXCD}, 1\ns_mul_i32 {sFT}, {sFT}, 6\ns_add_u32 {sFT}, {sFT}, s3\ns_lshr_b32 {sKQ}, {sXCD}, 1")


def entry():
    a("s_cmp_ge_u32 s2, 256\ns_cbranch_scc1 L_end")
    if OPT.get("probe"):
        a("s_memrealtime s[98:99]")
    a("s_load_dwordx16 s[16:31], s[0:1], 0\ns_load_dwordx8 s[32:39], s[0:1], 64")
    a("s_getpc_b64 s[68:69]")
    a("v_lshrrev_b32 v2, 6, v0\nv_and_b32 v1, 63, v0")
    a(f"s_and_b32 {sXCD}, s2, 7\ns_lshr_b32 {sI}, s2, 3")
    a(f"v_readfirstlane_b32 {sW8}, v2")
    a(f"s_and_b32 s3, {sXCD}, 1\ns_mul_i32 s3, s3, 30\ns_add_u32 s3, s3, {sI}\ns_lshr_b32 {sCT}, s3, 2\ns_and_b32 {sTT}, s3, 3")
    a(f"s_and_b32 s3, {sXCD}, 6\ns_lshl_b32 s3, s3, 1\ns_add_u32 {sTT}, {sTT}, s3")
    a(f"s_and_b32 {sW}, {sW8}, 3\ns_and_b32 s83, {sW8}, 1\ns_lshr_b32 s84, {sW}, 1")
    a(f"s_cmp_ge_u32 {sW8}, 4\ns_cbranch_scc1 L_T")
    a("s_and_b32 s68, s68, 0xffffff00\ns_mov_b32 s70, CODE_BYTES\ns_mov_b32 s71, 0x20000")
    a(f"s_mul_i32 s3, {sI}, {NLP * 128}\nv_lshlrev_b32 v8, 7, v0")
    L = a.newlabel("npf")
    a(f"s_cmp_lg_u32 {sW8}, 0\ns_cbranch_scc1 {L}")
    a(f"s_mov_b64 exec, {hex((1 << NLP) - 1)}\nbuffer_load_dword v253, v8, {sCODE}, s3 offen\ns_mov_b64 exec, -1")
    a.label(L)
    a(f"s_lshl_b32 s3, s2, 2\ns_add_u32 s3, s3, {sW}\ns_mul_i32 s3, s3, 2560")
    a("v_lshrrev_b32 v9, 5, v1\nv_mul_u32_u24 v10, 1280, v9\nv_and_b32 v8, 31, v1")
    a("v_lshlrev_b32 v14, 4, v8\nv_lshlrev_b32 v15, 3, v8\nv_add_u32 v12, v10, v14\nv_add_u32 v13, v10, v15")
    a("s_waitcnt lgkmcnt(0)")
    srd(sX, 16, 2048 * 1280)
    srd(sGW, 32, 1280)
    a(f"buffer_load_dwordx4 {v(LNX, 4)}, v12, {sX}, s3 offen")
    a(f"buffer_load_dwordx4 {v(LNX + 4, 4)}, v12, {sX}, s3 offen offset:512")
    a(f"buffer_load_dwordx2 {v(LNX + 8, 2)}, v13, {sX}, s3 offen offset:1024")
    a(f"buffer_load_dwordx4 {v(LNG, 4)}, v14, {sGW}, 0 offen")
    a(f"buffer_load_dwordx4 {v(LNG + 4, 4)}, v14, {sGW}, 0 offen offset:512")
    a(f"buffer_load_dwordx2 {v(LNG + 8, 2)}, v15, {sGW}, 0 offen offset:1024")
    build_ws_and_nonce_load()
    a("s_branch L_M")


class VM:
    def __init__(self):
        self.log = []

    def op(self, tag, text):
        a(text)
        self.log.append(tag)

    def wait(self, tag, extra=""):
        last = max(i for i, t in enumerate(self.log) if t == tag)
        n = len(self.log) - 1 - last
        assert n < 64
        a(f"s_waitcnt vmcnt({n}){extra}")


FB = max(2, OPT["npre"])


def t_front():
    a.label("L_T")
    vXO, vWO, vHO, vW1 = [2, 3, 4, 5], [6, 7, 8, 9], [10, 11], [12, 13, 14, 15]
    sXO, sWOF, sMA, sMB = "s60", "s61", "s62", "s63"
    a(f"s_lshl_b32 s3, {sTT}, 2\ns_add_u32 s3, s3, {sW}\ns_mul_i32 s3, s3, {32 * 1280}")
    a("v_lshrrev_b32 v16, 3, v1\nv_mul_u32_u24 v16, 1280, v16\nv_add_u32 v16, s3, v16")
    a("v_and_b32 v17, 7, v1\nv_lshrrev_b32 v18, 4, v1\nv_xor_b32 v17, v17, v18")
    a(f"v_lshl_add_u32 {v(vXO[0])}, v17, 4, v16\nv_xor_b32 v19, 64, {v(vXO[0])}")
    a(f"v_add_u32 {v(vXO[1])}, {8 * 1280 - 1024}, v19\nv_add_u32 {v(vXO[2])}, {2 * (8 * 1280 - 1024)}, {v(vXO[0])}\nv_add_u32 {v(vXO[3])}, {3 * (8 * 1280 - 1024)}, v19")
    a(f"s_mul_i32 s3, {sW}, {16 * 3840}\ns_lshl_b32 s85, {sCT}, 8\ns_add_u32 s3, s3, s85")
    a("v_and_b32 v17, 15, v1\nv_lshlrev_b32 v19, 2, v18\nv_xor_b32 v17, v17, v19\nv_lshlrev_b32 v17, 4, v17")
    a(f"v_mul_u32_u24 v16, 3840, v18\nv_add3_u32 {v(vWO[0])}, v16, v17, s3")
    for j in range(1, 4):
        a(f"v_add_u32 {v(vWO[j])}, {j * (4 * 3840 - 1024)}, {v(vWO[0])}")
    a(f"s_lshl_b32 {sMA}, {sW}, 12\ns_add_u32 {sMB}, {sMA}, {RINGB}")
    if OPT["rot"]:
        a(f"s_and_b32 s3, {sTT}, 3\ns_mul_i32 s3, s3, 5\ns_add_u32 s3, s3, 1\ns_lshr_b32 s3, s3, 1")
        a(f"s_add_u32 s3, s3, {sCT}")
        if OPT["rot"] == 1:
            a(f"s_lshr_b32 s85, {sXCD}, 1\ns_add_u32 s3, s3, s85")
        a("s_mul_i32 s85, s3, 26\ns_lshr_b32 s85, s85, 8\ns_mul_i32 s85, s85, 10\ns_sub_u32 s3, s3, s85")
        a(f"s_lshl_b32 {sXO}, s3, 7\ns_mul_i32 {sWOF}, s3, {64 * 3840}")
    else:
        a(f"s_mov_b32 {sXO}, 0\ns_mov_b32 {sWOF}, 0")
    a("s_waitcnt lgkmcnt(0)")
    stamp(0)
    srd(sX, 16, 2048 * 1280)
    srd(sWQ, 18, 640 * 3840)
    vm = VM()

    def group(tag, vregs, srdn, soff, mbase, moff, fl):
        a(f"s_add_u32 m0, {mbase}, {moff}")
        for j in range(4):
            vm.op(tag, f"buffer_load_dwordx4 {v(vregs[j])}, {srdn}, {soff} offen offset:{1024 * j} {fl} lds")

    def stage(s):
        slot = 16384 * (s % 4)
        if s < 10:
            group(s, vXO, sX, sXO, sMA, slot, OPT["ntx"])
            a(f"s_add_u32 {sXO}, {sXO}, 128")
            group(s, vWO, sWQ, sWOF, sMB, slot, OPT["ntw"])
            a(f"s_add_u32 {sWOF}, {sWOF}, {64 * 3840}\ns_cmp_eq_u32 {sXO}, 1280")
            a(f"s_cselect_b32 {sXO}, 0, {sXO}\ns_cselect_b32 {sWOF}, 0, {sWOF}")
            return
        if s == 10:
            if OPT["rot2"]:
                a(f"s_mul_i32 s3, {sDT}, 3\ns_add_u32 s3, s3, 1\ns_lshr_b32 s3, s3, 1\ns_add_u32 s3, s3, {sFT}\ns_and_b32 s3, s3, 7")
                a(f"s_mul_i32 {sXO}, s3, {8 * 10240}\ns_mul_i32 {sWOF}, s3, {64 * 3072}")
            else:
                a(f"s_mov_b32 {sXO}, 0\ns_mov_b32 {sWOF}, 0")
        group(s, vW1, sW1, sWOF, sMB, slot, OPT["ntw1"])
        a(f"s_add_u32 {sWOF}, {sWOF}, {64 * 3072}")
        if s == 10:
            vm.wait("hf")
            L = a.newlabel("hok")
            a(f"v_cmp_ne_u64 vcc, {sNONCE}, v[28:29]\ns_cbranch_vccz {L}")
            poll(30, 28, sleep=1)
            a.label(L)
        group(s, [vHO[0], vHO[0], vHO[1], vHO[1]], sWS, sXO, sMA, slot, "sc1")
        a(f"s_add_u32 {sXO}, {sXO}, {8 * 10240}\ns_cmp_eq_u32 {sXO}, {64 * 10240}")
        a(f"s_cselect_b32 {sXO}, 0, {sXO}\ns_cselect_b32 {sWOF}, 0, {sWOF}")

    def setup2():
        a("v_bfe_u32 v16, v1, 2, 2\nv_mul_u32_u24 v16, 1280, v16\nv_lshl_add_u32 v16, v18, 5, v16")
        a(f"v_and_b32 v19, 3, v1\nv_lshl_add_u32 v16, v19, 3, v16\ns_lshl_b32 s3, {sW}, 7\ns_add_u32 s3, s3, {XCH}\nv_add_u32 v16, s3, v16")
        a(f"v_lshlrev_b32 v19, 4, v1\ns_mul_i32 s85, s2, 10240\ns_lshl_b32 s3, {sW}, 10\ns_add_u32 s85, s85, s3\ns_add_u32 s85, s85, {HT}")
        a(f"v_mov_b32 {v(vCN)}, {CNT}\nv_mov_b32 {v(vONE)}, 1")
        a("s_waitcnt lgkmcnt(0)")
        make_nonce()

    def ln_store():
        for k in range(3):
            a(f"ds_read_b64_tr_b16 {v(192 + 4 * k, 2)}, v16 offset:{512 * k}\nds_read_b64_tr_b16 {v(194 + 4 * k, 2)}, v16 offset:{512 * k + 5120}")
        a(f"s_add_u32 s3, s85, 4096\ns_add_u32 s82, s85, 8192\ns_cmp_lt_u32 {sW}, 2\ns_cselect_b32 s82, s82, 0x80000000")
        for k, so in enumerate(("s85", "s3", "s82")):
            a(f"s_waitcnt lgkmcnt({4 - 2 * k})")
            vm.op("ln", f"buffer_store_dwordx4 {v(192 + 4 * k, 4)}, v19, {sWS}, {so} offen sc1")

    def ln_flag():
        a(f"s_lshl_b32 s85, s2, 4\ns_add_u32 s85, s85, {FLH}\ns_cmp_eq_u32 {sW}, 0\ns_cselect_b32 s85, s85, 0x80000000")
        set_flag("s85", 20)
        vm.log.append("lf")

    def setup3():
        g1_tile()
        srd(sW1, 24, 2048 * 3072)
        a(f"s_lshl_b32 s3, {sKQ}, 5\ns_add_u32 s3, s3, {sW}\ns_mul_i32 s3, s3, {16 * 3072}\ns_lshl_b32 s85, {sFT}, 8\ns_add_u32 s3, s3, s85")
        a(f"v_mul_u32_u24 v16, 3072, v18\nv_add3_u32 {v(vW1[0])}, v16, v17, s3")
        for j in range(1, 4):
            a(f"v_add_u32 {v(vW1[j])}, {j * (4 * 3072 - 1024)}, {v(vW1[0])}")
        a(f"s_lshl_b32 s3, {sKQ}, 5\ns_add_u32 s3, s3, {sW}\ns_mul_i32 s3, s3, 20480\ns_lshl_b32 s85, {sDT}, 11\ns_add_u32 s3, s3, s85\ns_add_u32 s3, s3, {HT}")
        a(f"v_add_u32 {v(vHO[0])}, s3, v19\nv_add_u32 {v(vHO[1])}, {10240 - 2048}, {v(vHO[0])}")
        a(f"s_lshl_b32 s3, {sKQ}, 10\ns_add_u32 s3, s3, {FLH}\nv_add_u32 v30, s3, v19")

    L = a.newlabel("nost0")
    a(f"s_cmp_ge_u32 {sI}, 30\ns_cbranch_scc1 {L}")
    stage(0)
    a.label(L)
    build_ws_and_nonce_load()
    a("v_lshlrev_b32 v19, 4, v1")
    setup3()
    att_setup_a()
    att_setup_b()
    setup2()
    a(f"s_cmp_ge_u32 {sI}, 30\ns_cbranch_scc1 L_T_idle")
    stage(1)
    vm.wait(0)
    a("s_barrier")
    stamp(1)
    if OPT.get("diag") == 1:
        stamp(1, True)
    ln_store()
    sched = {s: [s + 2] for s in range(0, 16)}
    if OPT["hold"] == 1:
        sched[9] = []
        sched[10] = [11, 12]
    if OPT["hold"] == 2:
        sched[9] = []
        sched[10] = [11]
        sched[11] = [12, 13]
    for x in sched[0]:
        stage(x)
    for s in range(1, 18):
        vm.wait(s)
        a("s_barrier")
        if 1 <= s - OPT.get("diag", 0) + 2 <= 11:
            stamp(s - OPT.get("diag", 0) + 2, True)
        if s == FB:
            ln_flag()
        if s == 10:
            stamp(2)
        for x in sched.get(s, []):
            if x == 9:
                vm.op("hf", f"buffer_load_dwordx2 v[28:29], v30, {sWS}, 0 offen sc1")
            stage(x)
    stamp(3)
    a("s_branch L_T_att")
    a.label("L_T_idle")
    a("s_barrier")
    ln_store()
    a("s_waitcnt vmcnt(0)\ns_barrier")
    ln_flag()
    if OPT["pfw1"]:
        a(f"s_and_b32 s3, {sI}, 1\ns_lshl_b32 s3, s3, 2\ns_add_u32 s3, s3, {sW}\ns_lshl_b32 s85, {sKQ}, 9\ns_add_u32 s3, s3, s85\ns_mul_i32 s3, s3, 3072")
        a(f"s_and_b32 s85, {sXCD}, 1\ns_mul_i32 s85, s85, 1536\ns_add_u32 s3, s3, s85")
        a("v_lshrrev_b32 v20, 2, v1\nv_mul_u32_u24 v20, 24576, v20\nv_and_b32 v21, 3, v1\nv_lshl_add_u32 v20, v21, 7, v20")
        for g in range(4):
            for c in range(3):
                a(f"buffer_load_dword v{192 + 3 * g + c}, v20, {sW1}, s3 offen offset:{512 * c} {OPT.get('ntpf', '')}")
            a(f"s_add_u32 s3, s3, {128 * 3072}")


ACC = 64
ACC2 = 128
FX = lambda buf, tb: 32 + 16 * buf + 4 * tb
FW = lambda buf, cb: 40 + 16 * buf + 4 * cb
vXA = [2, 3, 4, 5]
vWA = [6, 7]
vHA = [24, 25]
vWB = [26, 27]


def tile_reads(n, mode):
    st, ks, buf = n // 4, n % 4, n & 1
    slot = (st + (10 if mode == "g1" else 0)) % 4
    wa = vWB if mode == "g1" else vWA
    r = []
    for cb in range(2):
        for p in range(2):
            r.append(f"ds_read_b64_tr_b16 {v(FW(buf, cb) + 2 * p, 2)}, {v(wa[cb])} offset:{slot * 16384 + (16 * ks + 4 * p) * 256}")
    if mode == "g1":
        x = [f"ds_read_b128 {v(FX(buf, tb), 4)}, {v(vHA[tb])} offset:{slot * 16384 + ks * 4096}" for tb in range(2)]
    else:
        x = [f"ds_read_b128 {v(FX(buf, tb), 4)}, {v(vXA[ks])} offset:{slot * 16384 + tb * 4096}" for tb in range(2)]
    return [r[0], r[1], x[0], x[1], r[2], r[3]]


def tile_loop(mode):
    N = 32 if mode == "g1" else 40
    acc = ACC2 if mode == "g1" else ACC
    for r in tile_reads(0, mode):
        a(r)
    for n in range(N):
        buf = n & 1
        rd = tile_reads(n + 1, mode) if n < N - 1 else []
        a("s_waitcnt lgkmcnt(0)")
        for q, (cb, tb) in enumerate([(0, 0), (0, 1), (1, 1), (1, 0)]):
            d = acc + 16 * (2 * cb + tb)
            c = "0" if (n == 0 and not (mode == "g1" and q == 0)) else None
            if mode == "v":
                mfma32(d, FX(buf, tb), FW(buf, cb), c)
            else:
                mfma32(d, FW(buf, cb), FX(buf, tb), c)
            if q == 0 and n % 4 == 3 and n < N - 1:
                bn = n // 4 + 1 + (10 if mode == "g1" else 0)
                if bn == FB or bn == OPT["qb"]:
                    a("s_waitcnt vmcnt(0)")
                a("s_barrier")
            if q == 0 and n == N - 1 and mode == "g1":
                lds_arrive(C_R, vCN, vONE)
            if q < 2:
                for r in rd[3 * q:3 * q + 3]:
                    a(r)
            if q == 2 and mode == "g1" and n % 4 == 3 and n // 4 + 11 == OPT["qb"]:
                L = a.newlabel("nq")
                a(f"s_cmp_lg_u32 {sW}, 0\ns_cbranch_scc1 {L}")
                a(f"s_mov_b64 exec, 1\nbuffer_store_dwordx2 v[28:29], v30, {sWS}, 0 offen sc1\ns_mov_b64 exec, -1")
                a.label(L)


def half_sum(xs, ts):
    for rot in (8, 4, 2, 1):
        for x in xs:
            a(f"v_add_f32_dpp {v(x)}, {v(x)}, {v(x)} row_ror:{rot} row_mask:0xf bank_mask:0xf")
    for x, t in zip(xs, ts):
        a(f"v_mov_b32 {v(t)}, {v(x)}")
    for x, t in zip(xs, ts):
        a(f"v_permlane16_swap_b32 {v(t)}, {v(x)}")
    for x, t in zip(xs, ts):
        a(f"v_add_f32 {v(x)}, {v(x)}, {v(t)}")


def m_front():
    a.label("L_M")
    stamp(0)
    a(f"v_mov_b32 {v(vCN)}, {CNT}\nv_mov_b32 {v(vONE)}, 1")
    a(f"v_mov_b32 v16, 0\nv_lshl_add_u32 v17, v1, 2, {v(vCN)}")
    L = a.newlabel("nz")
    a(f"s_cmp_lg_u32 {sW8}, 0\ns_cbranch_scc1 {L}")
    a("s_mov_b64 exec, 0xffff\nds_write_b32 v17, v16\ns_mov_b64 exec, -1")
    a.label(L)
    g1_tile()
    srd(sB1, 26, 3072)
    srd(sW2, 28, 1536 * 4096)
    srd(sWO, 20, 640 * 1280)
    srd(sB2, 30, 4096)
    srd(sOUT, 34, 2048 * 1280)
    a(f"s_lshr_b32 s26, {sKQ}, 1\ns_and_b32 s27, {sKQ}, 1")
    a(f"s_lshl_b32 s24, {sFT}, 1\ns_add_u32 s24, s24, s83\ns_lshl_b32 s24, s24, 1\ns_add_u32 s24, s24, s26")
    a(f"s_lshl_b32 s25, {sDT}, 1\ns_add_u32 s25, s25, s84\ns_lshl_b32 s25, s25, 1\ns_add_u32 s25, s25, s27")
    a("v_lshlrev_b32 v16, 30, v9\nv_lshl_add_u32 v16, v8, 1, v16\ns_lshl_b32 s3, s24, 6")
    a(f"buffer_load_ushort v20, v16, {sB1}, s3 offen\nv_mov_b32 v21, 0\nv_mov_b32 v22, 0x3f80\nv_mov_b32 v23, 0")
    a(f"s_mul_i32 s3, {sW}, 2560\ns_add_u32 s3, s3, {XCH}\nv_add_u32 v12, s3, v12\nv_add_u32 v13, s3, v13")
    a("v_bfe_u32 v10, v1, 1, 3\nv_xor_b32 v10, v10, v9\nv_lshlrev_b32 v10, 4, v10")
    a("s_lshl_b32 s3, s84, 13\nv_lshl_add_u32 v11, v8, 7, s3")
    for ks in range(4):
        a(f"v_xor_b32 v16, {32 * ks}, v10\nv_add_u32 {v(vXA[ks])}, v11, v16")
    a("v_bfe_u32 v10, v1, 2, 2")
    a("v_lshl_add_u32 v11, v9, 3, v10\nv_lshlrev_b32 v11, 8, v11")
    a("v_bfe_u32 v16, v1, 4, 1\nv_lshl_add_u32 v11, v16, 5, v11")
    a("v_and_b32 v16, 3, v1\nv_lshl_add_u32 v11, v16, 3, v11")
    a(f"v_add_u32 v11, {RINGB}, v11")
    a(f"s_lshl_b32 s3, s83, 1\nv_xor_b32 v16, s3, v10\nv_lshl_add_u32 {v(vWA[0])}, v16, 6, v11\nv_xor_b32 {v(vWA[1])}, 64, {v(vWA[0])}")
    a(f"s_lshl_b32 s3, s26, 6\nv_xor_b32 {v(vWB[0])}, s3, {v(vWA[0])}\nv_xor_b32 {v(vWB[1])}, s3, {v(vWA[1])}")
    a(f"s_lshl_b32 s3, s84, 1\ns_add_u32 s3, s3, s27\ns_lshl_b32 s3, s3, 9\nv_lshlrev_b32 v16, 11, v9\nv_add3_u32 {v(vHA[0])}, v16, v14, s3")
    a(f"v_xor_b32 {v(vHA[1])}, 512, {v(vHA[0])}")
    a(f"v_bfe_u32 v16, v1, 1, 1\nv_xor_b32 v16, v16, v1\nv_and_b32 v16, 1, v16\nv_mul_u32_u24 v16, 24, v16")
    a(f"s_cmp_lt_u32 {sCT}, 10\ns_cselect_b32 s3, -1, 0\nv_and_b32 v16, s3, v16\nv_xor_b32 {v(vWA[0])}, v16, {v(vWA[0])}\nv_xor_b32 {v(vWA[1])}, v16, {v(vWA[1])}")
    a("v_lshlrev_b32 v16, 2, v9\nv_sub_u32 v16, v8, v16\nv_and_b32 v17, 1, v16\nv_lshlrev_b32 v17, 4, v17\nv_lshlrev_b32 v17, v17, v22\nv_lshrrev_b32 v16, 1, v16")
    for q in range(8):
        a(f"v_cmp_eq_u32 vcc, {(16 * (q >> 2) + 8 * ((q & 3) >> 1) + 2 * (q & 1)) // 2}, v16\nv_cndmask_b32 v{192 + q}, 0, v17, vcc")
    a(f"s_lshl_b32 s3, {sCT}, 4\ns_add_u32 s3, s3, {sTT}\ns_lshl_b32 s3, s3, 4\ns_add_u32 s3, s3, {FLQ}\nv_mov_b32 v30, s3")
    a(f"s_mov_b32 s28, 0x3f803f80\nv_mov_b32 v16, 0\nv_mov_b32 v17, 0\nv_mov_b32 v18, 0\nv_mov_b32 v19, 0")
    a("s_waitcnt lgkmcnt(0)")
    make_nonce()
    a("v_mov_b32 v28, s74\nv_mov_b32 v29, s75")
    X = 160
    a("s_waitcnt vmcnt(4)")
    stamp(1)
    for r in range(10):
        a(f"v_dot2_f32_bf16 v16, {v(LNX + r)}, s28, v16")
    for r in range(10):
        a(f"v_lshlrev_b32 {v(X + 2 * r)}, 16, {v(LNX + r)}\nv_and_b32 {v(X + 2 * r + 1)}, 0xffff0000, {v(LNX + r)}")
    a("s_waitcnt vmcnt(1)")
    for r in range(10):
        a(f"v_dot2_f32_bf16 v17, {v(LNX + r)}, {v(LNG + r)}, v17")
    half_sum([16, 17], [10, 11])
    a(f"v_mul_f32 v16, {hex(f2u(-1.0 / 640))}, v16")
    a(f"v_mul_f32 v17, {hex(f2u(-math.log2(math.e)))}, v17\nv_exp_f32 v31, v17")
    for r in range(0, 20, 2):
        a(f"v_pk_add_f32 {v(X + r, 2)}, {v(X + r, 2)}, v[16:17] op_sel_hi:[1,0]")
    for r in range(0, 20, 2):
        a(f"v_pk_fma_f32 v[18:19], {v(X + r, 2)}, {v(X + r, 2)}, v[18:19]")
    a("v_add_f32 v31, 1.0, v31\nv_add_f32 v18, v18, v19\nv_rcp_f32 v31, v31")
    half_sum([18], [10])
    a(f"v_mov_b32 v16, {hex(f2u(1e-5))}\nv_fmac_f32 v16, {hex(f2u(1.0 / 640))}, v18\nv_rsq_f32 v16, v16")
    a(f"s_lshl_b32 s3, s2, 7\ns_lshl_b32 s85, {sW}, 3\ns_add_u32 s85, s85, s3\ns_add_u32 s85, s85, {GATE}\nv_lshlrev_b32 v10, 2, v9")
    for r in range(0, 20, 2):
        a(f"v_pk_mul_f32 {v(X + r, 2)}, {v(X + r, 2)}, v[16:17] op_sel_hi:[1,0]")
    for r in range(10):
        a(f"v_cvt_pk_bf16_f32 {v(LNX + r)}, {v(X + 2 * r)}, {v(X + 2 * r + 1)}")
    a(f"ds_write_b128 v12, {v(LNX, 4)}\nds_write_b128 v12, {v(LNX + 4, 4)} offset:512\nds_write_b64 v13, {v(LNX + 8, 2)} offset:1024")
    a("s_mov_b32 exec_lo, 1\ns_mov_b32 exec_hi, 1")
    a(f"buffer_store_dword v31, v10, {sWS}, s85 offen sc1\ns_mov_b64 exec, -1")
    a("s_waitcnt lgkmcnt(0)")
    stamp(2)
    a("s_barrier")
    a(f"s_cmp_ge_u32 {sI}, 30\ns_cbranch_scc1 L_M_idle")
    a(f"s_cmp_ge_u32 {sCT}, 10\ns_cbranch_scc1 L_M_v")
    tile_loop("qk")
    stamp(3)
    a("v_lshl_add_u32 v10, v9, 15, v14")
    a(f"s_lshl_b32 s3, {sCT}, 1\ns_add_u32 s3, s3, s83\ns_lshl_b32 s3, s3, 18")
    a(f"s_lshl_b32 s85, {sTT}, 1\ns_add_u32 s85, s85, s84\ns_lshl_b32 s85, s85, 10\ns_add_u32 s85, s85, s3\ns_add_u32 s85, s85, {QK}")
    L = a.newlabel("noscale")
    a(f"s_cmp_ge_u32 {sCT}, 5\ns_cbranch_scc1 {L}")
    c = f2u(math.log2(math.e) / math.sqrt(20.0))
    a(f"s_mov_b32 s72, {c}\ns_mov_b32 s73, {c}")
    for cb, tb in [(0, 0), (0, 1), (1, 1), (1, 0)]:
        d = ACC + 16 * (2 * cb + tb)
        for r in range(0, 16, 2):
            a(f"v_pk_mul_f32 {v(d + r, 2)}, {v(d + r, 2)}, s[72:73]")
    a.label(L)
    for cb in range(2):
        for g in range(2):
            for tb in range(2):
                d = ACC + 16 * (2 * cb + tb) + 8 * g
                for r in range(4):
                    a(f"v_cvt_pk_bf16_f32 {v(d + r)}, {v(d + 2 * r)}, {v(d + 2 * r + 1)}")
                a(f"buffer_store_dwordx4 {v(d, 4)}, v10, {sWS}, s85 offen offset:{512 * tb} sc1")
            a("s_add_u32 s85, s85, 65536")
    a("s_branch L_M_g1")
    a.label("L_M_v")
    tile_loop("v")
    stamp(3)
    a("v_mul_u32_u24 v10, 4352, v9\ns_lshl_b32 s3, s83, 10\nv_add3_u32 v10, v10, v14, s3")
    a(f"s_lshl_b32 s85, {sCT}, 5\ns_lshl_b32 s3, {sTT}, 1\ns_add_u32 s85, s85, s3\ns_add_u32 s85, s85, s84")
    a(f"s_mul_i32 s85, s85, {2 * 8704}\ns_add_u32 s85, s85, {VV - 10 * VCT}\ns_add_u32 s72, s85, 8704")
    for cb, tb in [(0, 0), (0, 1), (1, 1), (1, 0)]:
        for st in range(2):
            d = ACC + 16 * (2 * cb + tb) + 8 * st
            for r in range(4):
                a(f"v_cvt_pk_bf16_f32 {v(d + r)}, {v(d + 2 * r)}, {v(d + 2 * r + 1)}")
            a(f"buffer_store_dwordx4 {v(d, 4)}, v10, {sWS}, {'s72' if tb else 's85'} offen offset:{2176 * st + 512 * cb} sc1")
    a(f"s_cmp_lg_u32 s83, 0\ns_cbranch_scc1 L_M_g1")
    a("v_lshrrev_b32 v11, 3, v1\nv_mul_u32_u24 v11, 2176, v11\nv_and_b32 v12, 7, v1\nv_lshl_add_u32 v11, v12, 4, v11")
    for r in range(4):
        a(f"v_mov_b32 v{16 + r}, 0x3f803f80")
    a(f"buffer_store_dwordx4 v[16:19], v11, {sWS}, s85 offen offset:2048 sc1")
    a.label("L_M_g1")
    mfma32k8(ACC2, 20, 22, "0")
    stamp(4)
    a("s_barrier")
    tile_loop("g1")
    stamp(5)


vD = [2, 3, 4, 5]
vR = [6, 7, 24, 25]
vU, vFU, vKQ, vL15, vA1, vA2 = 30, 31, 26, 27, 28, 29
vWOG = [48, 49, 50, 51, 52]
sSB, sDB, sWOFF, sUOFF, sM0, sWOO = "s30", "s31", "s18", "s19", "s23", "s32"
SEL = 192


def tail_setup():
    a(f"s_lshl_b32 {sSB}, {sXCD}, 2\ns_lshr_b32 s33, {sI}, 3\ns_add_u32 {sSB}, {sSB}, s33\ns_and_b32 {sDB}, {sI}, 7\ns_lshl_b32 {sM0}, {sW}, 15")
    a(f"v_lshrrev_b32 {v(vKQ)}, 4, v1\nv_and_b32 {v(vL15)}, 15, v1")
    a(f"s_mul_i32 s85, {sW}, {384 * 4096}\ns_lshl_b32 s3, {sSB}, 7\ns_add_u32 s3, s3, s85")
    a(f"v_lshrrev_b32 v10, 3, v1\nv_lshlrev_b32 v10, 12, v10\nv_lshlrev_b32 v11, 1, {v(vKQ)}\nv_and_b32 v12, 7, v1\nv_xor_b32 v11, v11, v12")
    a(f"v_lshlrev_b32 v11, 4, v11\nv_add3_u32 {v(vD[0])}, v10, v11, s3")
    for j in range(1, 4):
        a(f"v_add_u32 {v(vD[j])}, {j * (8 * 4096 - 1024)}, {v(vD[0])}")
    a("v_bfe_u32 v10, v1, 2, 3")
    a("v_lshl_add_u32 v11, v9, 4, v10\nv_lshlrev_b32 v11, 7, v11")
    a(f"v_and_b32 v12, 3, v1\nv_lshlrev_b32 v12, 3, v12\nv_add3_u32 v11, v11, v12, {sM0}")
    a(f"v_lshrrev_b32 v13, 1, v10\nv_xor_b32 v13, {sW}, v13\nv_lshl_add_u32 {v(vR[0])}, v13, 5, v11")
    for sb in range(1, 4):
        a(f"v_xor_b32 {v(vR[sb])}, {32 * sb}, {v(vR[0])}")
    a(f"v_mul_u32_u24 v11, 20, v9\nv_add_u32 v11, v10, v11\nv_mul_u32_u24 v11, 160, v11\nv_add3_u32 {v(vA1)}, v11, v12, {sM0}")
    a(f"v_bfe_u32 v10, v1, 2, 2\nv_mul_u32_u24 v11, 20, {v(vKQ)}\nv_add3_u32 v10, v10, v11, 16\nv_mul_u32_u24 v10, 160, v10\nv_add3_u32 {v(vA2)}, v10, v12, {sM0}")
    a(f"s_mul_i32 s85, {sW}, {12 * 40960}\ns_mul_i32 s3, {sDB}, 1280\ns_add_u32 s3, s3, s85\ns_add_u32 s3, s3, {UU}")
    a(f"v_mul_u32_u24 v10, 10240, {v(vKQ)}\nv_lshlrev_b32 v11, 4, {v(vL15)}\nv_add3_u32 {v(vU)}, v10, v11, s3")
    if OPT["rot3"]:
        a(f"s_lshl_b32 s3, s33, 1\ns_add_u32 s3, s3, {sDB}\ns_mul_i32 s3, s3, 3\ns_lshr_b32 s3, s3, 1\ns_sub_u32 s85, s3, 12\ns_cmp_ge_u32 s3, 12\ns_cselect_b32 s3, s85, s3")
        a(f"s_lshl_b32 {sWOFF}, s3, 17\ns_mul_i32 {sUOFF}, s3, 40960")
    else:
        a(f"s_mov_b32 {sWOFF}, 0\ns_mov_b32 {sUOFF}, 0")
    a("v_mul_u32_u24 v10, 43, v1\nv_lshrrev_b32 v10, 9, v10\nv_mul_u32_u24 v11, 12, v10\nv_sub_u32 v11, v1, v11\nv_min_u32 v10, 2, v10")
    a(f"s_mul_i32 s3, {sDB}, 80\ns_lshr_b32 s3, s3, 5\nv_add_u32 v10, s3, v10\nv_mul_u32_u24 v10, 48, v10")
    a(f"s_mul_i32 s3, {sW}, 12\nv_add3_u32 v10, v10, v11, s3\nv_lshlrev_b32 v10, 4, v10\nv_add_u32 {v(vFU)}, {FLU}, v10")
    a(f"s_mul_i32 s85, {sW}, {160 * 1280}\ns_mul_i32 s3, {sDB}, 160\ns_add_u32 s3, s3, s85")
    for j in range(5):
        a(f"v_add_u32 v10, {64 * j}, v1\nv_mul_u32_u24 v11, 205, v10\nv_lshrrev_b32 v11, 11, v11\nv_mul_u32_u24 v11, {1280 - 160}, v11")
        if j < 4:
            a(f"v_lshlrev_b32 v10, 4, v1")
        else:
            a(f"v_lshlrev_b32 v10, 4, v10")
        a(f"v_add3_u32 {v(vWOG[j])}, v10, v11, s3")


def wo_group(g):
    if g < 4:
        a(f"s_add_u32 s3, s33, {g}\ns_and_b32 s3, s3, 3\ns_mul_i32 {sWOO}, s3, {32 * 1280}\ns_mul_i32 s3, s3, 5120\ns_add_u32 s3, s3, {sM0}")
    else:
        a(f"s_mov_b32 {sWOO}, {4 * 32 * 1280}\ns_add_u32 s3, {sM0}, {4 * 5120}")
    dma_group(vWOG[:4], sWO, sWOO, "s3", OPT["ntwo"])
    dma_group(vWOG[4:], sWO, sWOO, ("s3", 4096), OPT["ntwo"])


def m_mid():
    for k in (1, 3, 2):
        d = ACC2 + 16 * k
        for r in range(8):
            a(f"v_cvt_pk_bf16_f32 {v(d + r)}, {v(d + 2 * r)}, {v(d + 2 * r + 1)}")
    a(f"s_setprio {OPT['gprio_v']}")
    tail_setup()
    a(f"s_mul_i32 s16, {sFT}, 5\ns_add_u32 s16, s16, {sDT}\ns_lshl_b32 s16, s16, 2\nv_lshlrev_b32 v10, 4, v1")
    a(f"s_add_u32 s17, s16, {sKQ}\ns_lshl_b32 s17, s17, 2\ns_add_u32 s17, s17, {sW}")
    a(f"s_lshl_b32 s3, s16, 2\ns_add_u32 s3, s3, {sW}\ns_lshl_b32 s3, s3, 6\ns_add_u32 s3, s3, {FLP}")
    a("v_and_b32 v11, 3, v1\nv_lshl_add_u32 v11, v11, 8, s3")
    lds_wait(C_R, 8 if OPT["waitts"] else 4, vCN, 16, sleep=2)
    a(f"s_setprio {OPT['gprio_m']}")
    for k in (1, 3, 2):
        a(f"s_xor_b32 s3, {sKQ}, {k}\ns_add_u32 s3, s3, s16\ns_lshl_b32 s3, s3, 2\ns_add_u32 s3, s3, {sW}\ns_mul_i32 s3, s3, 6144\ns_add_u32 s3, s3, {PB + 2048 * (k - 1)}")
        for q in range(2):
            a(f"buffer_store_dwordx4 {v(ACC2 + 16 * k + 4 * q, 4)}, v10, {sWS}, s3 offen offset:{1024 * q} sc1")
    a(f"s_lshl_b32 s85, s17, 6\ns_add_u32 s85, s85, {FLP}")
    a(f"s_waitcnt vmcnt(0)\ns_setprio {OPT['gprio_v']}")
    set_flag("s85", 16)
    a(f"s_setprio {OPT['gprio_m']}")
    a(";@thr")
    wo_group(0)
    a(f"s_setprio {OPT['gprio_v']}")
    poll(11, 12, sleep=4)
    a(f"s_setprio {OPT['gprio_m']}")
    a(f"s_mul_i32 s3, s17, 6144\ns_add_u32 s3, s3, {PB}")
    for k in (1, 2, 3):
        for q in range(2):
            a(f"buffer_load_dwordx4 {v(ACC2 + 16 * k + 4 * q, 4)}, v10, {sWS}, s3 offen offset:{1024 * q} sc1")
        a("s_add_u32 s3, s3, 2048")
    wo_group(1)
    a(f"s_waitcnt vmcnt(5)\ns_setprio {OPT['gprio_v']}")
    A0, T0 = ACC2, ACC2 + 16
    for k in (1, 2, 3):
        for q in range(2):
            mfma32(A0, SEL + 4 * q, A0 + 16 * k + 4 * q)
    c1 = -2.0 * math.sqrt(2.0 / math.pi) * math.log2(math.e)
    c2 = c1 * 0.044715
    a(f"s_mov_b32 s26, {hex(f2u(c2))}\ns_mov_b32 s27, {hex(f2u(c2))}\nv_mov_b32 v16, {hex(f2u(c1))}\nv_mov_b32 v17, {hex(f2u(c1))}")
    for r in range(0, 16, 2):
        a(f"v_pk_mul_f32 {v(T0 + r, 2)}, {v(A0 + r, 2)}, {v(A0 + r, 2)}")
    for r in range(0, 16, 2):
        a(f"v_pk_fma_f32 {v(T0 + r, 2)}, {v(T0 + r, 2)}, s[26:27], v[16:17]")
    for r in range(0, 16, 2):
        a(f"v_pk_mul_f32 {v(T0 + r, 2)}, {v(T0 + r, 2)}, {v(A0 + r, 2)}")
    for r in range(16):
        a(f"v_exp_f32 {v(T0 + r)}, {v(T0 + r)}")
    for r in range(0, 16, 2):
        a(f"v_pk_add_f32 {v(T0 + r, 2)}, {v(T0 + r, 2)}, 1.0 op_sel_hi:[1,0]")
    for r in range(16):
        a(f"v_rcp_f32 {v(T0 + r)}, {v(T0 + r)}")
    for r in range(0, 16, 2):
        a(f"v_pk_mul_f32 {v(A0 + r, 2)}, {v(A0 + r, 2)}, {v(T0 + r, 2)}")
    for r in range(8):
        a(f"v_cvt_pk_bf16_f32 {v(A0 + r)}, {v(A0 + 2 * r)}, {v(A0 + 2 * r + 1)}")
    a("v_mul_u32_u24 v10, 10240, v9\nv_add_u32 v10, v10, v14")
    a(f"s_mul_i32 s85, s24, 40960\ns_lshl_b32 s3, s25, 9\ns_add_u32 s85, s85, s3\ns_add_u32 s85, s85, {UU}\ns_add_u32 s3, s85, 20480")
    a(f"buffer_store_dwordx4 {v(A0, 4)}, v10, {sWS}, s85 offen sc1")
    a(f"buffer_store_dwordx4 {v(A0 + 4, 4)}, v10, {sWS}, s3 offen sc1")
    a(f"s_mul_i32 s85, s25, 48\ns_add_u32 s85, s85, s24\ns_lshl_b32 s85, s85, 4\ns_add_u32 s85, s85, {FLU}")
    a(f"s_setprio {OPT['gprio_m']}")
    wo_group(2)
    a(f"s_waitcnt vmcnt(5)\ns_setprio {OPT['gprio_v']}")
    set_flag("s85", 16)
    a("s_branch L_M_j")
    a.label("L_M_idle")
    a(f"s_waitcnt vmcnt(0)\ns_barrier")
    tail_setup()
    a(f"s_setprio {OPT['gprio_v']}")
    lds_wait(C_R, 4, vCN, 16, sleep=8)
    a(f"s_setprio {OPT['gprio_m']}")
    for g in range(3):
        wo_group(g)
    a.label("L_M_j")
    a(f"s_setprio {OPT['gprio_v']}")
    a(f"s_lshl_b32 s24, {sSB}, 2\ns_add_u32 s24, s24, {sW}")
    a(f"v_lshrrev_b32 v10, 3, {v(vL15)}\nv_lshlrev_b32 v10, 7, v10\nv_and_b32 v11, 7, {v(vL15)}\nv_lshl_add_u32 v10, v11, 2, v10\nv_lshlrev_b32 v11, 1, {v(vL15)}")


def dma_group(vregs, srdn, soff, m0base, fl=""):
    a(f"s_mov_b32 m0, {m0base}" if not isinstance(m0base, tuple) else f"s_add_u32 m0, {m0base[0]}, {m0base[1]}")
    for j, r in enumerate(vregs):
        a(f"buffer_load_dwordx4 {v(r)}, {srdn}, {soff} offen offset:{1024 * j} {fl} lds")


OO = lambda c: 128 + 16 * c
SS = lambda b: 192 + 16 * b
PP = 224
Q1 = lambda c: 32 + 6 * c
Q2 = lambda c: 36 + 6 * c
MM = lambda c: 56 + c
vK1, vK2, vV = 60, 61, 62
KB = lambda b: 64 + 14 * b
sK, sKb, sV, sLOOP, sMODE, sH = "s16", "s17", "s18", "s19", "s20", "s21"
sQT = "s34"


def kv_loads(b, koff):
    B = KB(b)
    return [
        f"buffer_load_dwordx4 {v(B, 4)}, {v(vK1)}, {sWS}, {sK} offen offset:{koff} sc1",
        f"buffer_load_dword {v(B + 4)}, {v(vK2)}, {sWS}, {sK} offen offset:{koff} sc1",
        f"buffer_load_dwordx4 {v(B + 6, 4)}, {v(vV)}, {sWS}, {sV} offen sc1",
        f"buffer_load_dwordx4 {v(B + 10, 4)}, {v(vV)}, {sWS}, {sV} offen offset:2176 sc1",
    ]


def maxbody():
    T = [192, 208, 224, 8]
    for c in range(4):
        mfma32(T[c], KB(0), Q1(c), "0")
        mfma32k8(T[c], KB(0) + 4, Q2(c))
    for c in range(4):
        for r in range(0, 16, 2):
            a(f"v_max3_f32 {v(MM(c))}, {v(MM(c))}, {v(T[c] + r)}, {v(T[c] + r + 1)}")


def att_slot(tl, extra):
    c, b = tl & 3, (tl >> 2) & 3
    cn, bn = (tl + 1) & 3, ((tl + 1) >> 2) & 3
    cp, bp = (tl - 1) & 3, ((tl - 1) >> 2) & 3
    S, Sn = SS(tl & 1), SS((tl + 1) & 1)
    ms = [
        lambda: mfma32(Sn, KB(bn), Q1(cn), "0"),
        lambda: mfma32k8(Sn, KB(bn) + 4, Q2(cn)),
        lambda: mfma32(OO(cp), KB(bp) + 10, PP + 4),
        lambda: mfma32(OO(c), KB(b) + 6, PP),
    ]
    for q in range(4):
        ms[q]()
        for x in extra.get(q, []):
            a(x)
        for r in range(4):
            a(f"v_exp_f32 {v(S + 4 * q + r)}, {v(S + 4 * q + r)}")
        for r in range(2):
            a(f"v_cvt_pk_bf16_f32 {v(PP + 2 * q + r)}, {v(S + 4 * q + 2 * r)}, {v(S + 4 * q + 2 * r + 1)}")


def att_setup_a():
    a(f"s_lshl_b32 {sH}, {sXCD}, 2\ns_lshr_b32 s3, {sI}, 3\ns_add_u32 {sH}, {sH}, s3")
    a(f"s_and_b32 {sQT}, {sI}, 7\ns_lshl_b32 {sQT}, {sQT}, 1\ns_add_u32 {sQT}, {sQT}, s84")
    a(f"s_mul_i32 s23, {sH}, 20\ns_add_u32 s35, s23, 19\ns_lshr_b32 s33, s23, 7\ns_lshr_b32 s35, s35, 7")
    a("v_bfe_u32 v22, v1, 3, 1\ns_sub_u32 s3, s35, s33\nv_mul_u32_u24 v22, s3, v22\nv_add_u32 v22, s33, v22")
    a("v_lshrrev_b32 v23, 4, v1\nv_add_u32 v23, 1, v23\nv_mul_u32_u24 v23, 5, v23")
    a("v_and_b32 v24, 7, v1\ns_lshl_b32 s3, s83, 3\nv_add_u32 v24, s3, v24")
    a(f"v_cmp_gt_u32 vcc, 32, v1\nv_mov_b32 v25, {sQT}")
    a("v_cndmask_b32 v23, 0, v23, vcc\nv_cndmask_b32 v24, v25, v24, vcc")
    a("v_add_u32 v22, v22, v23\nv_lshl_add_u32 v22, v22, 4, v24\nv_lshlrev_b32 v22, 4, v22")
    a(f"v_add_u32 v31, {FLQ}, v22")
    a("v_and_b32 v20, 31, v1\nv_lshrrev_b32 v21, 5, v1")
    a(f"s_and_b32 s3, {sH}, 1\nv_add_u32 v22, s3, v21\nv_lshlrev_b32 v22, 15, v22\nv_lshl_add_u32 {v(vK1)}, v20, 4, v22")
    a(f"s_cmp_eq_u32 s3, 0\ns_cselect_b32 s3, 0x10000, 8\nv_lshlrev_b32 v22, 2, v21\nv_lshl_add_u32 v22, v20, 4, v22\nv_add_u32 {v(vK2)}, s3, v22")
    a(f"s_lshl_b32 s29, {sQT}, 1\ns_add_u32 s29, s29, s83")
    a(f"v_lshrrev_b32 v22, 3, v20\nv_lshlrev_b32 v22, 7, v22\nv_and_b32 v23, 7, v1\nv_lshl_add_u32 v22, v23, 2, v22")
    a(f"s_lshl_b32 s3, s29, 10\ns_add_u32 s3, s3, {GATE}\nv_add_u32 v63, s3, v22")
    a(f"s_lshl_b32 s3, s29, 7\ns_add_u32 s3, s3, {FLH}\nv_lshl_add_u32 v22, v23, 4, s3\nv_cmp_gt_u32 vcc, 48, v1\nv_cndmask_b32 v31, v22, v31, vcc")
    a("v_add_u32 v22, s23, v20\nv_lshrrev_b32 v23, 7, v22\nv_and_b32 v22, 127, v22")
    a("v_cmp_gt_u32 vcc, 20, v20\nv_mov_b32 v24, s33\nv_mov_b32 v25, 128")
    a("v_cndmask_b32 v23, v24, v23, vcc\nv_cndmask_b32 v22, v25, v22, vcc")
    a(f"v_mul_u32_u24 v23, {VCT}, v23\nv_lshl_add_u32 v23, v22, 4, v23\nv_mul_u32_u24 v24, 4352, v21\nv_add_u32 {v(vV)}, v23, v24")
    if OPT.get("zrows", 1):
        a(f"s_mov_b32 s30, {hex(0xeef00000)}\ns_mov_b32 s31, {hex(0xeef00000)}\nv_mov_b32 v24, 0x80000000")
        a(f"v_cndmask_b32 {v(vV)}, {v(vV)}, v24, s[30:31]")
    a(f"s_mul_i32 s26, {sH}, 5\ns_lshr_b32 s26, s26, 1\ns_lshl_b32 s26, s26, 15\ns_add_u32 s26, s26, {QK}")
    a(f"s_lshl_b32 s3, s83, 14\ns_add_u32 s27, s26, s3\ns_add_u32 s27, s27, {80 * 32768}")
    a(f"s_lshl_b32 s3, {sQT}, 11\ns_add_u32 s26, s26, s3")
    a(f"s_mul_i32 s28, s83, {32 * 8704}\ns_add_u32 s28, s28, {VV}")
    a(f"s_mov_b32 {sMODE}, {OPT['force_fb'] & 1}")


def att_setup_b():
    for b in range(4):
        a(f"v_mov_b32 {v(KB(b) + 5)}, 0x3f803f80")
    for r in range(64):
        a(f"v_mov_b32 {v(OO(0) + r)}, 0")


def t_att():
    a.label("L_T_att")
    a(f"s_setprio {OPT['aprio']}")
    poll(31, 28, sleep=1)
    stamp(4)
    a("s_lshl_b32 s3, s83, 10\ns_add_u32 s29, s26, s3\ns_xor_b32 s3, s3, 1024\ns_add_u32 s30, s26, s3")
    for c in range(4):
        s0 = "s29" if c < 2 else "s30"
        off = 512 * (c & 1)
        a(f"buffer_load_dwordx4 {v(Q1(c), 4)}, {v(vK1)}, {sWS}, {s0} offen offset:{off} sc1")
        a(f"buffer_load_dword {v(Q2(c))}, {v(vK2)}, {sWS}, {s0} offen offset:{off} sc1")
    a(f"buffer_load_dword v120, v63, {sWS}, 0 offen sc1\nbuffer_load_dword v121, v63, {sWS}, 0 offen offset:512 sc1")
    a.label("L_att_start")
    for c in range(4):
        a(f"v_mov_b32 {v(Q2(c) + 1)}, 0\nv_mov_b32 {v(MM(c))}, 0xff800000")
    a(f"s_cmp_eq_u32 {sMODE}, 0\ns_cbranch_scc1 L_att_go")
    a(f"s_add_u32 {sK}, s27, {31 * 512}")
    a.label("L_att_max")
    for x in kv_loads(0, 0)[:2]:
        a(x)
    a("s_waitcnt vmcnt(0)")
    maxbody()
    a(f"s_sub_u32 {sK}, {sK}, 512\ns_cmp_lg_u32 {sK}, s27\ns_cbranch_scc1 L_att_max")
    for r in range(64):
        a(f"v_mov_b32 {v(OO(0) + r)}, 0")
    a.label("L_att_go")
    a(f"s_mov_b32 {sK}, s27\ns_mov_b32 {sV}, s28")
    for b in range(3):
        for x in kv_loads(b, 512 * b):
            a(x)
        a(f"s_add_u32 {sV}, {sV}, 8704")
    for r in range(4):
        a(f"v_mov_b32 {v(KB(3) + 10 + r)}, 0")
    a("s_waitcnt vmcnt(10)")
    lds_arrive(C_R, vCN, vONE)
    stamp(5)
    maxbody()
    a("v_cmp_gt_u32 vcc, 32, v1")
    for c in range(4):
        a(f"v_mov_b32 v{2 + c}, {v(MM(c))}")
    for c in range(4):
        a(f"v_permlane32_swap_b32 v{2 + c}, {v(MM(c))}")
    for c in range(4):
        a(f"v_max_f32 {v(MM(c))}, v{2 + c}, {v(MM(c))}")
    for c in range(4):
        a(f"v_and_b32 v{2 + c}, 0xffff0000, {v(MM(c))}")
    for c in range(4):
        a(f"v_sub_f32 v{8 + c}, {v(MM(c))}, v{2 + c}")
    for c in range(4):
        a(f"v_and_b32 v{12 + c}, 0xffff0000, v{8 + c}")
    for c in range(4):
        a(f"v_sub_f32 v{8 + c}, v{8 + c}, v{12 + c}")
    for c in range(4):
        a(f"v_cvt_pk_bf16_f32 v{2 + c}, -v{2 + c}, -v{12 + c}")
    for c in range(4):
        a(f"v_cvt_pk_bf16_f32 v{8 + c}, -v{8 + c}, 0")
    for c in range(4):
        a(f"v_cndmask_b32 {v(Q2(c) + 1)}, v{8 + c}, v{2 + c}, vcc")
    mfma32(SS(0), KB(0), Q1(0), "0")
    mfma32k8(SS(0), KB(0) + 4, Q2(0))
    for r in range(4):
        a(f"v_mov_b32 {v(PP + 4 + r)}, 0")
    a(f"s_mov_b32 {sLOOP}, 8\ns_waitcnt vmcnt(8)\ns_nop 7")
    stamp(6)
    cstamp(10)
    a(".p2align 6")
    a(";@hot")
    a.label("L_att_loop")
    for tl in range(16):
        j, c = tl >> 2, tl & 3
        ld = kv_loads((j + 3) & 3, 512 * (j + 3))
        if OPT.get("x_noload"):
            ld = ["s_nop 0"] * 4
        extra = {}
        if c == 0:
            extra = {0: [ld[0]], 3: [ld[1]]}
        elif c == 1:
            extra = {0: [ld[2]], 3: [ld[3]]}
        elif c == 2:
            extra = {0: [f"s_add_u32 {sV}, {sV}, 8704"], 3: ["s_waitcnt vmcnt(8)"]}
            if j == 3:
                extra[2] = [f"s_add_u32 {sK}, {sK}, 2048"]
        elif c == 3 and j == 3:
            extra = {0: [f"s_sub_u32 {sLOOP}, {sLOOP}, 1"], 2: [f"s_cmp_lg_u32 {sLOOP}, 0"]}
        att_slot(tl, extra)
    a("s_cbranch_scc1 L_att_loop")
    a(";@endhot")
    mfma32(OO(3), KB(3) + 10, PP + 4)
    stamp(7)
    cstamp(11)
    a("s_waitcnt vmcnt(0)")
    a(f"v_max3_f32 v2, {v(OO(0) + 12)}, {v(OO(1) + 12)}, {v(OO(2) + 12)}\nv_max_f32 v2, v2, {v(OO(3) + 12)}")
    a(f"v_cmp_lt_f32 vcc, {hex(f2u(2.0 ** 30))}, v2\ns_cbranch_vccz L_att_ok")
    if OPT.get("x_noload"):
        a("s_branch L_att_ok")
    a(f"s_cmp_lg_u32 {sMODE}, 0\ns_cbranch_scc1 L_att_ok\ns_mov_b32 {sMODE}, 1\ns_branch L_att_start")
    a.label("L_att_ok")
    lds_arrive(C_TD, vCN, vONE)
    a(f"s_mul_i32 s3, {sW}, 7168\ns_add_u32 s3, s3, {XCH}\nv_lshl_add_u32 v2, v1, 4, s3\nv_lshl_add_u32 v3, v1, 3, s3")
    a(f"s_xor_b32 s29, {sW}, 1\ns_mul_i32 s29, s29, 7168\ns_add_u32 s29, s29, {XCH}\nv_lshl_add_u32 v4, v1, 4, s29\nv_lshl_add_u32 v5, v1, 3, s29")
    for k in range(2):
        a(f"v_mov_b32 {v(OO(2 + k) + 13)}, {v(MM(2 + k))}")
        for q in range(3):
            a(f"ds_write_b128 v2, {v(OO(2 + k) + 4 * q, 4)} offset:{3584 * k + 1024 * q}")
        a(f"ds_write_b64 v3, {v(OO(2 + k) + 12, 2)} offset:{3584 * k + 3072}")
    a(f"s_lshl_b32 s3, s84, 2\nv_add_u32 v6, s3, {v(vCN)}")
    lds_arrive(C_O0, 6, vONE)
    a("v_and_b32 v8, 31, v1\nv_lshrrev_b32 v9, 5, v1")
    a("v_lshlrev_b32 v10, 15, v9\nv_lshl_add_u32 v10, v8, 4, v10")
    a("v_lshlrev_b32 v11, 31, v9\nv_lshl_add_u32 v11, v8, 3, v11")
    a(f"s_lshl_b32 s30, {sQT}, 1\ns_add_u32 s30, s30, s83")
    a(f"s_lshl_b32 s31, {sH}, 16\ns_lshl_b32 s3, s30, 10\ns_add_u32 s31, s31, s3\ns_add_u32 s31, s31, {O1}")
    a(f"s_lshl_b32 s32, {sH}, 14\ns_lshl_b32 s3, s30, 9\ns_add_u32 s32, s32, s3\ns_add_u32 s32, s32, {O2}")
    a(f"s_lshl_b32 s33, s30, 5\ns_add_u32 s33, s33, {sH}\ns_lshl_b32 s33, s33, 7\ns_add_u32 s33, s33, {FLO}")
    lds_wait(C_O0, 2, 6, 7, sleep=0)
    R = lambda k: 64 + 16 * k
    for k in range(2):
        a(f"ds_read_b64 {v(R(k) + 12, 2)}, v5 offset:{3584 * k + 3072}")
    for k in range(2):
        for q in range(3):
            a(f"ds_read_b128 {v(R(k) + 4 * q, 4)}, v4 offset:{3584 * k + 1024 * q}")
    a("s_waitcnt lgkmcnt(6)")
    for k in range(2):
        t = 12 + 4 * k
        a(f"v_max_f32 v{t}, {v(MM(k))}, {v(R(k) + 13)}")
        a(f"v_sub_f32 v{t + 2}, {v(R(k) + 13)}, v{t}\nv_sub_f32 v{t}, {v(MM(k))}, v{t}")
        a(f"v_exp_f32 v{t}, v{t}\nv_exp_f32 v{t + 2}, v{t + 2}")
    for k in range(2):
        t = 12 + 4 * k
        a(f"v_mul_f32 v{t + 1}, v{t}, {v(OO(k) + 12)}\nv_fma_f32 v{t + 1}, v{t + 2}, {v(R(k) + 12)}, v{t + 1}")
        a(f"v_rcp_f32 v{t + 1}, v{t + 1}")
    for k in range(2):
        t = 12 + 4 * k
        a(f"v_mul_f32 v{t + 1}, v{120 + k}, v{t + 1}\nv_mul_f32 v{t}, v{t}, v{t + 1}\nv_mul_f32 v{t + 2}, v{t + 2}, v{t + 1}")
    for k in range(2):
        t = 12 + 4 * k
        a(f"s_waitcnt lgkmcnt({3 * (1 - k)})")
        for r in range(0, 12, 2):
            a(f"v_pk_mul_f32 {v(OO(k) + r, 2)}, {v(OO(k) + r, 2)}, {v(t, 2)} op_sel_hi:[1,0]")
        for r in range(0, 12, 2):
            a(f"v_pk_fma_f32 {v(OO(k) + r, 2)}, {v(R(k) + r, 2)}, {v(t + 2, 2)}, {v(OO(k) + r, 2)} op_sel_hi:[1,0,1]")
        for r in range(6):
            a(f"v_cvt_pk_bf16_f32 {v(OO(k) + r)}, {v(OO(k) + 2 * r)}, {v(OO(k) + 2 * r + 1)}")
        a(f"buffer_store_dwordx4 {v(OO(k), 4)}, v10, {sWS}, s31 offen offset:{512 * k} sc1")
        a(f"buffer_store_dwordx2 {v(OO(k) + 4, 2)}, v11, {sWS}, s32 offen offset:{256 * k} sc1")
    stamp(8)
    a("s_waitcnt vmcnt(0)")
    set_flag("s33", 16)
    stamp(9)
    dump_stamps()
    a("s_endpgm")


def m_tail():
    GA = lambda sb, blk: 64 + 20 * sb + 4 * blk
    UB = lambda slot, blk: 144 + 20 * slot + 4 * blk
    WF = lambda sb: 32 + 4 * sb
    WB = lambda t, blk: 144 + 20 * t + 4 * blk
    OF = lambda buf, sb: 16 + 16 * buf + 4 * sb
    W2R = 20480
    LA = 2
    vm = VM()

    def w2_ops(st):
        ops = [[f"s_add_u32 m0, {sM0}, {W2R + 4096 * (st % 3)}", "s_nop 0"], [], [], []]
        for j in range(4):
            ops[j].append(("w", st, f"buffer_load_dwordx4 {v(vD[j])}, {sW2}, {sWOFF} offen offset:{1024 * j} {OPT['ntw2']} lds"))
        ops[-1].append(f"s_add_u32 {sWOFF}, {sWOFF}, {32 * 4096}\ns_cmp_eq_u32 {sWOFF}, {384 * 4096}\ns_cselect_b32 {sWOFF}, 0, {sWOFF}")
        return ops

    def u_ops(st):
        ops = []
        for blk in range(5):
            ops.append([("u", st, f"buffer_load_dwordx4 {v(UB(st % 4, blk), 4)}, {v(vU)}, {sWS}, {sUOFF} offen offset:{256 * blk} sc1")])
        ops[-1].append(f"s_add_u32 {sUOFF}, {sUOFF}, 40960\ns_cmp_eq_u32 {sUOFF}, {12 * 40960}\ns_cselect_b32 {sUOFF}, 0, {sUOFF}")
        return ops

    def emit(op):
        for x in op:
            if isinstance(x, tuple):
                vm.op((x[0], x[1]), x[2])
            else:
                a(x)

    a.label("L_G2")
    stamp(6)
    a(f"s_setprio {OPT['gprio_m']}")
    for st in range(LA):
        for o in w2_ops(st):
            emit(o)
    wo_group(3)
    a(f"s_setprio {OPT['gprio_v']}")
    poll(vFU, 12, sleep=8)
    stamp(7)
    a(f"s_setprio {OPT['gprio_m']}")
    for sb in range(4):
        a(f"s_xor_b32 s3, s24, {sb}\ns_lshl_b32 s3, s3, 8\ns_add_u32 s3, s3, {GATE}\nbuffer_load_dword v{244 + 2 * sb}, v10, {sWS}, s3 offen sc1")
    a(f"s_lshl_b32 s3, s24, 5\nbuffer_load_ushort v252, v11, {sB2}, s3 offen")
    for st in range(LA):
        for o in u_ops(st):
            emit(o)
    hold = 12 - OPT["g2hold"]
    for s in range(12):
        ops = (w2_ops(s + LA) + u_ops(s + LA)) if s + LA < 12 else []
        if s == hold:
            for o in ops:
                emit(o)
            ops = []
            stamp(8)
            a(";@endthr")
            a(f"s_setprio {OPT['gprio_v']}")
            lds_wait(C_TD, 4, vCN, 12, sleep=OPT["tdsleep"])
            a(f"s_setprio {OPT['gprio_w']}")
        vm.wait(("u", s))
        for sb in range(4):
            for p in range(2):
                a(f"ds_read_b64_tr_b16 {v(WF(sb) + 2 * p, 2)}, {v(vR[sb])} offset:{W2R + 4096 * (s % 3) + 1024 * p}")
        k = 0
        for sb in range(4):
            a(f"s_waitcnt lgkmcnt({2 * (3 - sb)})")
            if s == 11 and sb == 3:
                wo_group(4)
            for blk in range(5):
                mfma16(GA(sb, blk), UB(s % 4, blk), WF(sb), "0" if s == 0 else None)
                k += 1
                if k % 2 == 0 and ops:
                    emit(ops.pop(0))
        assert not ops

    def wo_reads(t):
        out = []
        for blk in range(5):
            for p in range(2):
                if t < 4:
                    out.append(f"ds_read_b64_tr_b16 {v(WB(t, blk) + 2 * p, 2)}, {v(vA1)} offset:{(40 * t + 8 * p) * 160 + 32 * blk}")
                else:
                    out.append(f"ds_read_b64_tr_b16 {v(WB(t, blk) + 2 * p, 2)}, {v(vA2)} offset:{80 * p * 160 + 32 * blk}")
        return out

    if hold == 12:
        stamp(8)
        a(";@endthr")
    a(f"s_setprio {OPT['gprio_v']}")
    for t in range(3):
        for x in wo_reads(t):
            a(x)
    for sb in range(4):
        a(f"v_sub_f32 v{244 + 2 * sb}, 1.0, v{244 + 2 * sb}")
    a("v_lshlrev_b32 v252, 16, v252\nv_mul_f32 v252, v252, v244")
    for sb in range(4):
        for r in range(0, 20, 2):
            if sb == 0:
                a(f"v_pk_fma_f32 {v(GA(sb, 0) + r, 2)}, {v(GA(sb, 0) + r, 2)}, {v(244, 2)}, v[252:253] op_sel_hi:[1,0,0]")
            else:
                a(f"v_pk_mul_f32 {v(GA(sb, 0) + r, 2)}, {v(GA(sb, 0) + r, 2)}, {v(244 + 2 * sb, 2)} op_sel_hi:[1,0]")
    a("s_waitcnt vmcnt(0)")
    for t in range(3, 5):
        for x in wo_reads(t):
            a(x)
    vO1, vO2 = [2, 3, 4, 5], [6, 7, 8, 9]
    a(f"s_lshl_b32 s3, {sW}, 8\nv_lshlrev_b32 v2, 15, {v(vKQ)}\nv_lshl_add_u32 v2, {v(vL15)}, 4, v2\nv_add_u32 v2, s3, v2")
    for sb in range(1, 4):
        a(f"v_xor_b32 {v(vO1[sb])}, {256 * sb}, v2")
    for sb in range(4):
        a(f"v_lshrrev_b32 {v(vO2[sb])}, 1, {v(vO1[sb])}")
    a(f"s_lshl_b32 s26, {sW}, 19\ns_lshl_b32 s3, {sSB}, 10\ns_add_u32 s26, s26, s3\ns_lshr_b32 s3, s3, 1\ns_add_u32 s26, s26, {O1}")
    a(f"s_lshl_b32 s27, {sW}, 17\ns_add_u32 s27, s27, s3\ns_add_u32 s27, s27, {O2}\ns_add_u32 s29, s27, 0x10000")
    a(f"v_mul_u32_u24 v10, 1280, {v(vL15)}\nv_lshl_add_u32 v10, {v(vKQ)}, 3, v10")
    a(f"s_mul_i32 s28, s24, {16 * 1280}\ns_mul_i32 s3, {sDB}, 160\ns_add_u32 s28, s28, s3")
    a(f"v_lshl_add_u32 v11, v1, 4, {sM0}")
    for k in (1, 2, 3):
        a(f"v_xor_b32 v{244 + k}, {k << 15}, v11")
    a(f"v_and_b32 v12, 7, v1\ns_lshl_b32 s3, {sSB}, 2\ns_add_u32 s3, s3, {sW}\ns_lshl_b32 s3, s3, 10\ns_add_u32 s3, s3, {FLO}\nv_lshl_add_u32 v14, v12, 7, s3")
    if hold == 12:
        lds_wait(C_TD, 4, vCN, 12, sleep=OPT["tdsleep"])
    stamp(9)
    poll(14, 12, sleep=OPT["osleep"])
    stamp(10)
    vm = VM()

    def o_loads(t):
        if t < 4:
            for sb in range(4):
                vm.op(t, f"buffer_load_dwordx4 {v(OF(t % 3, sb), 4)}, {v(vO1[sb])}, {sWS}, s26 offen sc1")
            a("s_add_u32 s26, s26, 0x20000")
        else:
            for sb in range(4):
                for p in range(2):
                    vm.op(t, f"buffer_load_dwordx2 {v(OF(t % 3, sb) + 2 * p, 2)}, {v(vO2[sb])}, {sWS}, {'s29' if p else 's27'} offen sc1")

    for t in range(3):
        o_loads(t)
    for t in range(5):
        vm.wait(t, " lgkmcnt(0)" if t == 0 else "")
        for sb in ((0, 1, 2, 3) if t < 4 else (1, 2, 3, 0)):
            for blk in range(5):
                mfma16(GA(sb, blk), WB(t, blk), OF(t % 3, sb))
            if t == 4 and sb in (3, 0):
                k = {3: 1, 0: 2}[sb]
                for q in range(5):
                    a(f"ds_write_b128 v11, {v(GA(k, q), 4)} offset:{5120 * (k - 1) + 1024 * q}")
        if t + 3 < 5:
            o_loads(t + 3)
    for q in range(5):
        a(f"ds_write_b128 v11, {v(GA(3, q), 4)} offset:{5120 * 2 + 1024 * q}")
    a("s_waitcnt lgkmcnt(0)\ns_barrier")
    for q in range(5):
        for k in (1, 2, 3):
            a(f"ds_read_b128 {v(GA(k, q), 4)}, v{244 + k} offset:{5120 * (k - 1) + 1024 * q}")
    for q in range(5):
        a(f"s_waitcnt lgkmcnt({3 * (4 - q)})")
        d = GA(0, q)
        for r in (0, 2):
            a(f"v_pk_add_f32 {v(GA(1, q) + r, 2)}, {v(GA(1, q) + r, 2)}, {v(GA(2, q) + r, 2)}")
            a(f"v_pk_add_f32 {v(d + r, 2)}, {v(d + r, 2)}, {v(GA(3, q) + r, 2)}")
        for r in (0, 2):
            a(f"v_pk_add_f32 {v(d + r, 2)}, {v(d + r, 2)}, {v(GA(1, q) + r, 2)}")
        a(f"v_cvt_pk_bf16_f32 {v(d)}, {v(d)}, {v(d + 1)}\nv_cvt_pk_bf16_f32 {v(d + 1)}, {v(d + 2)}, {v(d + 3)}")
        a(f"buffer_store_dwordx2 {v(d, 2)}, v10, {sOUT}, s28 offen offset:{32 * q} {OPT['outfl']}")
    stamp(11)
    L = a.newlabel("noe")
    a(f"s_or_b32 s3, s2, {sW}\ns_cmp_lg_u32 s3, 0\ns_cbranch_scc1 {L}\ns_mov_b32 s85, {WS_E}")
    set_flag("s85", 16)
    a.label(L)
    dump_stamps()
    a.label("L_end")
    a("s_endpgm")


entry()
t_front()
t_att()
ROLE[0] = "M"
m_front()
m_mid()
m_tail()

lines = []
thr = False
for l in a.lines:
    if l.startswith(";@thr"):
        thr = True
        continue
    if l.startswith(";@endthr"):
        thr = False
        continue
    lines.append(l.replace("CODE_BYTES", "0x8000"))
    if thr and OPT["thr"] >= 0 and l.startswith("buffer_") and "x4" in l.split()[0]:
        lines.append(f"s_waitcnt vmcnt({OPT['thr']})")
lines = fix_hazards(lines, verbose=bool(OPT.get("v")))
lines = fix_align(lines, verbose=bool(OPT.get("v")))
from asmlib import sizes_of
total = sum(sizes_of(lines)) + 64
code_bytes = total // 128 * 128 - 256
lines = [l.replace("s_mov_b32 s70, 0x8000", f"s_mov_b32 s70, {hex(code_bytes)}") for l in lines]

ref = open(os.path.join(os.path.dirname(os.path.abspath(__file__)), "header.txt")).read()
out = ref
out += f"; @launch grid=(256,1,1) block=(512,1,1) lds={LDS_SIZE}\n"
out += f'.amdgcn_target "amdgcn-amd-amdhsa--gfx950"\n.text\n.globl {NAME}_kernel\n.p2align 8\n.type {NAME}_kernel,@function\n{NAME}_kernel:\n'
for l in lines:
    if l.startswith(";@"):
        continue
    out += (l if l.endswith(":") else "    " + l) + "\n"
out += f""".section .rodata,"a"
.p2align 6
.amdhsa_kernel {NAME}_kernel
  .amdhsa_next_free_vgpr 256
  .amdhsa_next_free_sgpr 102
  .amdhsa_accum_offset 256
  .amdhsa_group_segment_fixed_size 0
  .amdhsa_kernarg_size 96
  .amdhsa_user_sgpr_count 2
  .amdhsa_user_sgpr_kernarg_segment_ptr 1
  .amdhsa_system_sgpr_workgroup_id_x 1
.end_amdhsa_kernel
"""
open(sys.argv[1], "w").write(out)
print("code bytes", total, "lds", LDS_SIZE, "ws_end", hex(WS_END))
```

```python
import sys, os, struct, math
sys.path.insert(0, os.path.dirname(os.path.abspath(__file__)))
from asmlib import Asm, fix_hazards, fix_align

NAME = "gated_mix__mha_block__mixer_token_mlp__prompt"
OPT = dict(eqb=17, rotk=1, fb=3, qsleep=1, g2miss=3, thrh=7, eq=17, ntn=0, catch=11, touchh=0, epre=8, estep=2, mprio=1, pf0=2, rot3=1, waitts=1, g2hold=6, tdsleep=4, gprio_w=0, outfl='', thr=3, pfw1=0, hold=1, npre=2, qb=11, rot=1, rot2=1, ntx="", ntw="", ntw1="", ntw2="", ntwo="", g2la=2, g2spread=1, osleep=1, aprio=1, gprio_v=3, gprio_m=0, stamps=0, pattern="even", spin=1 << 16, force_fb=0)
for a in sys.argv[2:]:
    k, v = a.split("=")
    OPT[k] = int(v) if v.lstrip("-").isdigit() else v


def f2u(x):
    return struct.unpack("<I", struct.pack("<f", x))[0]


WS_E = 0
FLH = 0x1000
FLQ = 0x2000
FLU = 0x4000
FLP = 0x8000
FLO = 0x18000
GATE = 0x38000
DBGT = 0x40000
QK = 0x90000
assert DBGT + 2048 * 64 <= QK
VV = QK + 320 * 16384
VCT = 64 * 8704
HT = VV + 5 * VCT
UU = HT + 256 * 10240
O1 = UU + 96 * 2 * 640 * 16
O2 = O1 + 32 * 2 * 2048 * 16
PB = O2 + 32 * 2048 * 8
WS_END = PB + 60 * 16 * 6144

RINGA = 0
RINGB = 65536
XCH = 131072
CNT = XCH + 4 * 7168
LDS_SIZE = CNT + 64
C_R, C_G2, C_G3, C_G4, C_O0, C_O1, C_TD = [4 * i for i in range(7)]

sX, sWQ, sWS = "s[4:7]", "s[8:11]", "s[12:15]"
sW1, sW2, sWO, sB1, sB2, sGW, sOUT, sCODE = ["s[%d:%d]" % (i, i + 3) for i in range(40, 72, 4)]
sNONCE = "s[74:75]"
sW8, sW, sXCD, sI = "s76", "s77", "s78", "s79"
sTT, sCT = "s80", "s81"
sRB = "s82"
RB = f"s_lshl_b32 {sRB}, {sXCD}, 5\ns_add_u32 {sRB}, {sRB}, {sI}\n"
sFT, sDT, sKQ = "s36", "s37", "s22"
STAMP0 = 86

a = Asm()


def v(i, n=1):
    return f"v{i}" if n == 1 else f"v[{i}:{i + n - 1}]"


def srd(dst, lo, nbytes):
    d = int(dst[2:dst.index(":")])
    a(f"s_mov_b32 s{d}, s{lo}\ns_mov_b32 s{d + 1}, s{lo + 1}\ns_mov_b32 s{d + 2}, {nbytes}\ns_mov_b32 s{d + 3}, 0x20000")


ROLE = ["T"]


def stamp(i, diag=False):
    dg = OPT.get("diag") if ROLE[0] == "T" else OPT.get("mdiag")
    if dg and not diag and i > 0:
        return
    if diag and (not dg or (diag is not True and diag != dg)):
        return
    if OPT["stamps"]:
        a(f"s_memrealtime s[100:101]\ns_waitcnt lgkmcnt(0)\ns_mov_b32 s{STAMP0 + i}, s100")


def cstamp(i):
    if OPT["stamps"] and not OPT.get("diag"):
        a(f"s_memtime s[100:101]\ns_waitcnt lgkmcnt(0)\ns_mov_b32 s{STAMP0 + i}, s100")


def probe_end():
    if OPT.get("probe") != ROLE[0]:
        return
    L, Ld = a.newlabel("pr"), a.newlabel("prd")
    if OPT.get("pwg", -1) >= 0:
        a(f"s_cmp_lg_u32 s2, {OPT['pwg']}\ns_cbranch_scc1 {Ld}")
    else:
        a(f"s_cmp_ge_u32 {sI}, 30\ns_cbranch_scc1 {Ld}")
    if OPT["pb"] >= 0:
        a(f"s_add_u32 s3, s{STAMP0 + OPT['pb']}, 10000")
    else:
        a(f"s_add_u32 s3, s98, 10000")
    a.label(L)
    a(f"s_sleep 1\ns_memrealtime s[100:101]\ns_waitcnt lgkmcnt(0)\ns_sub_u32 s82, s100, s3\ns_cmp_lt_i32 s82, 0\ns_cbranch_scc1 {L}")
    a.label(Ld)


def dump_stamps():
    probe_end()
    if OPT["stamps"] and not OPT.get("probe"):
        a(f"s_lshl_b32 s3, s2, 3\ns_add_u32 s3, s3, {sW8}\ns_lshl_b32 s3, s3, 6\ns_add_u32 s3, s3, {DBGT}")
        a("v_mov_b32 v2, 0")
        for q in range(3):
            for r in range(4):
                a(f"v_mov_b32 v{4 + r}, s{STAMP0 + 4 * q + r}")
            a(f"buffer_store_dwordx4 v[4:7], v2, {sWS}, s3 offen offset:{16 * q}")
            a("s_nop 1")


def lds_arrive(cnt, vC, vOne):
    a(f"s_mov_b64 exec, 1\nds_add_u32 {v(vC)}, {v(vOne)} offset:{cnt}\ns_mov_b64 exec, -1")


def lds_wait(cnt, n, vC, vT, sleep=1):
    L, Ld = a.newlabel("lw"), a.newlabel("lwd")
    a(f"s_mov_b32 s82, {OPT['spin'] * 4}")
    a.label(L)
    a(f"ds_read_b32 {v(vT)}, {v(vC)} offset:{cnt}\ns_waitcnt lgkmcnt(0)\nv_readfirstlane_b32 s3, {v(vT)}")
    a(f"s_cmp_ge_u32 s3, {n}\ns_cbranch_scc1 {Ld}")
    if sleep:
        a(f"s_sleep {sleep}")
    a(f"s_sub_u32 s82, s82, 1\ns_cmp_lg_u32 s82, 0\ns_cbranch_scc1 {L}")
    a.label(Ld)


def poll(vA, vT, sleep=2):
    L, Ld = a.newlabel("po"), a.newlabel("pod")
    a(f"s_mov_b32 s82, {OPT['spin']}")
    a.label(L)
    a(f"buffer_load_dwordx2 {v(vT, 2)}, {v(vA)}, {sWS}, 0 offen sc1\ns_waitcnt vmcnt(0)")
    a(f"v_cmp_ne_u64 vcc, {sNONCE}, {v(vT, 2)}\ns_cbranch_vccz {Ld}")
    if sleep:
        a(f"s_sleep {sleep}")
    a(f"s_sub_u32 s82, s82, 1\ns_cmp_lg_u32 s82, 0\ns_cbranch_scc1 {L}")
    a.label(Ld)


def set_flag(soff, vT):
    a(f"v_mov_b32 {v(vT)}, s74\nv_mov_b32 {v(vT + 1)}, s75\nv_mov_b32 {v(vT + 2)}, 0")
    a(f"s_mov_b64 exec, 1\nbuffer_store_dwordx2 {v(vT, 2)}, {v(vT + 2)}, {sWS}, {soff} offen sc1\ns_mov_b64 exec, -1")


def mfma32(d, x, y, c=None):
    a(f"v_mfma_f32_32x32x16_bf16 {v(d, 16)}, {v(x, 4)}, {v(y, 4)}, {v(d, 16) if c is None else c}")


def mfma32k8(d, x, y, c=None):
    a(f"v_mfma_f32_32x32x8_bf16 {v(d, 16)}, {v(x, 2)}, {v(y, 2)}, {v(d, 16) if c is None else c}")


def mfma16(d, x, y, c=None):
    a(f"v_mfma_f32_16x16x32_bf16 {v(d, 4)}, {v(x, 4)}, {v(y, 4)}, {v(d, 4) if c is None else c}")


vL = 1
vCN = 254
vONE = 255


LNX, LNG = 200, 210
NLP = 10


def build_ws_and_nonce_load():
    srd(sWS, 38, WS_END)
    a(f"s_load_dwordx2 s[72:73], s[38:39], {WS_E}")


def make_nonce():
    a("s_mul_i32 s74, s72, 1664525\ns_add_u32 s74, s74, 1013904223")
    a("s_mul_i32 s75, s73, 22695477\ns_add_u32 s75, s75, 0x3c6ef35f")


def g1_tile():
    a(f"s_mul_i32 s3, {sI}, 52\ns_lshr_b32 s3, s3, 8\ns_mul_i32 {sDT}, s3, 5\ns_sub_u32 {sDT}, {sI}, {sDT}")
    a(f"s_and_b32 {sFT}, {sXCD}, 1\ns_mul_i32 {sFT}, {sFT}, 6\ns_add_u32 {sFT}, {sFT}, s3\ns_lshr_b32 {sKQ}, {sXCD}, 1")


def entry():
    a("s_cmp_ge_u32 s2, 256\ns_cbranch_scc1 L_end")
    if OPT.get("probe"):
        a("s_memrealtime s[98:99]")
    a("s_load_dwordx16 s[16:31], s[0:1], 0\ns_load_dwordx8 s[32:39], s[0:1], 64")
    a("s_getpc_b64 s[68:69]")
    a("v_lshrrev_b32 v2, 6, v0\nv_and_b32 v1, 63, v0")
    a(f"s_and_b32 {sXCD}, s2, 7\ns_lshr_b32 {sI}, s2, 3")
    a(f"v_readfirstlane_b32 {sW8}, v2")
    a(f"s_and_b32 s3, {sXCD}, 1\ns_mul_i32 s3, s3, 30\ns_add_u32 s3, s3, {sI}\ns_lshr_b32 {sCT}, s3, 2\ns_and_b32 {sTT}, s3, 3")
    a(f"s_and_b32 s3, {sXCD}, 6\ns_lshl_b32 s3, s3, 1\ns_add_u32 {sTT}, {sTT}, s3")
    a(f"s_and_b32 {sW}, {sW8}, 3\ns_and_b32 s83, {sW8}, 1\ns_lshr_b32 s84, {sW}, 1")
    a(f"s_cmp_ge_u32 {sW8}, 4\ns_cbranch_scc1 L_T")
    a("s_and_b32 s68, s68, 0xffffff00\ns_mov_b32 s70, CODE_BYTES\ns_mov_b32 s71, 0x20000")
    a(f"s_mul_i32 s3, {sI}, {NLP * 128}\nv_lshlrev_b32 v8, 7, v0")
    L = a.newlabel("npf")
    a(f"s_cmp_lg_u32 {sW8}, 0\ns_cbranch_scc1 {L}")
    a(f"s_mov_b64 exec, {hex((1 << NLP) - 1)}\nbuffer_load_dword v253, v8, {sCODE}, s3 offen\ns_mov_b64 exec, -1")
    a.label(L)
    a(RB + f"s_lshl_b32 s3, {sRB}, 2\ns_add_u32 s3, s3, {sW}\ns_mul_i32 s3, s3, 2560")
    a("v_lshrrev_b32 v9, 5, v1\nv_mul_u32_u24 v10, 1280, v9\nv_and_b32 v8, 31, v1")
    a("v_lshlrev_b32 v14, 4, v8\nv_lshlrev_b32 v15, 3, v8\nv_add_u32 v12, v10, v14\nv_add_u32 v13, v10, v15")
    a("s_waitcnt lgkmcnt(0)")
    srd(sX, 16, 2048 * 1280)
    srd(sGW, 32, 1280)
    a(f"buffer_load_dwordx4 {v(LNX, 4)}, v12, {sX}, s3 offen")
    a(f"buffer_load_dwordx4 {v(LNX + 4, 4)}, v12, {sX}, s3 offen offset:512")
    a(f"buffer_load_dwordx2 {v(LNX + 8, 2)}, v13, {sX}, s3 offen offset:1024")
    a(f"buffer_load_dwordx4 {v(LNG, 4)}, v14, {sGW}, 0 offen")
    a(f"buffer_load_dwordx4 {v(LNG + 4, 4)}, v14, {sGW}, 0 offen offset:512")
    a(f"buffer_load_dwordx2 {v(LNG + 8, 2)}, v15, {sGW}, 0 offen offset:1024")
    build_ws_and_nonce_load()
    a("s_branch L_M")


class VM:
    def __init__(self):
        self.log = []

    def op(self, tag, text):
        a(text)
        self.log.append(tag)

    def wait(self, tag, extra=""):
        last = max(i for i, t in enumerate(self.log) if t == tag)
        n = len(self.log) - 1 - last
        assert n < 64
        a(f"s_waitcnt vmcnt({n}){extra}")


FB = OPT["fb"]


def t_front():
    a.label("L_T")
    vXO, vWO, vHO, vW1 = [2, 3, 4, 5], [6, 7, 8, 9], [10, 11], [12, 13, 14, 15]
    sXO, sWOF, sMA, sMB = "s60", "s61", "s62", "s63"
    a(f"s_lshl_b32 s3, {sTT}, 2\ns_add_u32 s3, s3, {sW}\ns_mul_i32 s3, s3, {32 * 1280}")
    a("v_lshrrev_b32 v16, 3, v1\nv_mul_u32_u24 v16, 1280, v16\nv_add_u32 v16, s3, v16")
    a("v_and_b32 v17, 7, v1\nv_lshrrev_b32 v18, 4, v1\nv_xor_b32 v17, v17, v18")
    a(f"v_lshl_add_u32 {v(vXO[0])}, v17, 4, v16\nv_xor_b32 v19, 64, {v(vXO[0])}")
    a(f"v_add_u32 {v(vXO[1])}, {8 * 1280 - 1024}, v19\nv_add_u32 {v(vXO[2])}, {2 * (8 * 1280 - 1024)}, {v(vXO[0])}\nv_add_u32 {v(vXO[3])}, {3 * (8 * 1280 - 1024)}, v19")
    a(f"s_mul_i32 s3, {sW}, {16 * 3840}\ns_lshl_b32 s85, {sCT}, 8\ns_add_u32 s3, s3, s85")
    a("v_and_b32 v17, 15, v1\nv_lshlrev_b32 v19, 2, v18\nv_xor_b32 v17, v17, v19\nv_lshlrev_b32 v17, 4, v17")
    a(f"v_mul_u32_u24 v16, 3840, v18\nv_add3_u32 {v(vWO[0])}, v16, v17, s3")
    for j in range(1, 4):
        a(f"v_add_u32 {v(vWO[j])}, {j * (4 * 3840 - 1024)}, {v(vWO[0])}")
    a(f"s_lshl_b32 {sMA}, {sW}, 12\ns_add_u32 {sMB}, {sMA}, {RINGB}")
    if OPT["rot"]:
        a(f"s_and_b32 s3, {sTT}, 3\ns_mul_i32 s3, s3, 5\ns_add_u32 s3, s3, 1\ns_lshr_b32 s3, s3, 1")
        a(f"s_add_u32 s3, s3, {sCT}")
        if OPT["rot"] == 1:
            a(f"s_lshr_b32 s85, {sXCD}, 1\ns_add_u32 s3, s3, s85")
        a("s_mul_i32 s85, s3, 26\ns_lshr_b32 s85, s85, 8\ns_mul_i32 s85, s85, 10\ns_sub_u32 s3, s3, s85")
        a(f"s_lshl_b32 {sXO}, s3, 7\ns_mul_i32 {sWOF}, s3, {64 * 3840}")
    else:
        a(f"s_mov_b32 {sXO}, 0\ns_mov_b32 {sWOF}, 0")
    a("s_waitcnt lgkmcnt(0)")
    stamp(0)
    srd(sX, 16, 2048 * 1280)
    srd(sWQ, 18, 640 * 3840)
    vm = VM()

    def group(tag, vregs, srdn, soff, mbase, moff, fl):
        a(f"s_add_u32 m0, {mbase}, {moff}")
        for j in range(4):
            vm.op(tag, f"buffer_load_dwordx4 {v(vregs[j])}, {srdn}, {soff} offen offset:{1024 * j} {fl} lds")

    def stage(s):
        slot = 16384 * (s % 4)
        if s < 10:
            group(s, vXO, sX, sXO, sMA, slot, OPT["ntx"])
            a(f"s_add_u32 {sXO}, {sXO}, 128")
            group(s, vWO, sWQ, sWOF, sMB, slot, OPT["ntw"])
            a(f"s_add_u32 {sWOF}, {sWOF}, {64 * 3840}\ns_cmp_eq_u32 {sXO}, 1280")
            a(f"s_cselect_b32 {sXO}, 0, {sXO}\ns_cselect_b32 {sWOF}, 0, {sWOF}")
            return
        if s == 10:
            if OPT["rot2"]:
                a(f"s_mul_i32 s3, {sDT}, 3\ns_add_u32 s3, s3, 1\ns_lshr_b32 s3, s3, 1\ns_add_u32 s3, s3, {sFT}\ns_and_b32 s3, s3, 7")
                a(f"s_mul_i32 {sXO}, s3, {8 * 10240}\ns_mul_i32 {sWOF}, s3, {64 * 3072}")
            else:
                a(f"s_mov_b32 {sXO}, 0\ns_mov_b32 {sWOF}, 0")
        group(s, vW1, sW1, sWOF, sMB, slot, "nt" if s < 10 + OPT["ntn"] else "")
        a(f"s_add_u32 {sWOF}, {sWOF}, {64 * 3072}")
        if s == 10:
            vm.wait("hf")
            L = a.newlabel("hok")
            a(f"v_cmp_ne_u64 vcc, {sNONCE}, v[28:29]\ns_cbranch_vccz {L}")
            poll(30, 28, sleep=1)
            a.label(L)
        group(s, [vHO[0], vHO[0], vHO[1], vHO[1]], sWS, sXO, sMA, slot, "sc1")
        a(f"s_add_u32 {sXO}, {sXO}, {8 * 10240}\ns_cmp_eq_u32 {sXO}, {64 * 10240}")
        a(f"s_cselect_b32 {sXO}, 0, {sXO}\ns_cselect_b32 {sWOF}, 0, {sWOF}")

    def setup2():
        a("v_bfe_u32 v16, v1, 2, 2\nv_mul_u32_u24 v16, 1280, v16\nv_lshl_add_u32 v16, v18, 5, v16")
        a(f"v_and_b32 v19, 3, v1\nv_lshl_add_u32 v16, v19, 3, v16\ns_lshl_b32 s3, {sW}, 7\ns_add_u32 s3, s3, {XCH}\nv_add_u32 v16, s3, v16")
        a(RB + f"v_lshlrev_b32 v19, 4, v1\ns_mul_i32 s85, {sRB}, 10240\ns_lshl_b32 s3, {sW}, 10\ns_add_u32 s85, s85, s3\ns_add_u32 s85, s85, {HT}")
        a(f"v_mov_b32 {v(vCN)}, {CNT}\nv_mov_b32 {v(vONE)}, 1")
        a("s_waitcnt lgkmcnt(0)")
        make_nonce()

    def ln_store():
        for k in range(3):
            a(f"ds_read_b64_tr_b16 {v(192 + 4 * k, 2)}, v16 offset:{512 * k}\nds_read_b64_tr_b16 {v(194 + 4 * k, 2)}, v16 offset:{512 * k + 5120}")
        a(f"s_add_u32 s3, s85, 4096\ns_add_u32 s82, s85, 8192\ns_cmp_lt_u32 {sW}, 2\ns_cselect_b32 s82, s82, 0x80000000")
        for k, so in enumerate(("s85", "s3", "s82")):
            a(f"s_waitcnt lgkmcnt({4 - 2 * k})")
            vm.op("ln", f"buffer_store_dwordx4 {v(192 + 4 * k, 4)}, v19, {sWS}, {so} offen sc1")

    def ln_flag():
        a(RB + f"s_lshl_b32 s85, {sRB}, 4\ns_add_u32 s85, s85, {FLH}\ns_cmp_eq_u32 {sW}, 0\ns_cselect_b32 s85, s85, 0x80000000")
        set_flag("s85", 20)
        vm.log.append("lf")

    def setup3():
        g1_tile()
        srd(sW1, 24, 2048 * 3072)
        a(f"s_lshl_b32 s3, {sKQ}, 5\ns_add_u32 s3, s3, {sW}\ns_mul_i32 s3, s3, {16 * 3072}\ns_lshl_b32 s85, {sFT}, 8\ns_add_u32 s3, s3, s85")
        a(f"v_mul_u32_u24 v16, 3072, v18\nv_add3_u32 {v(vW1[0])}, v16, v17, s3")
        for j in range(1, 4):
            a(f"v_add_u32 {v(vW1[j])}, {j * (4 * 3072 - 1024)}, {v(vW1[0])}")
        a(f"s_lshl_b32 s3, {sKQ}, 5\ns_add_u32 s3, s3, {sW}\ns_mul_i32 s3, s3, 20480\ns_lshl_b32 s85, {sDT}, 11\ns_add_u32 s3, s3, s85\ns_add_u32 s3, s3, {HT}")
        a(f"v_add_u32 {v(vHO[0])}, s3, v19\nv_add_u32 {v(vHO[1])}, {10240 - 2048}, {v(vHO[0])}")
        a(f"s_lshl_b32 s3, {sKQ}, 10\ns_add_u32 s3, s3, {FLH}\nv_add_u32 v30, s3, v19")
        a(f"s_lshl_b32 s3, {sI}, 2\ns_add_u32 s3, s3, {sW}\ns_mul_i32 s3, s3, 43\nv_min_u32 v26, 42, v1\nv_add_u32 v26, s3, v26\nv_min_u32 v26, 5119, v26")
        a(f"s_mul_i32 s3, {sKQ}, {64 * 10240}\ns_add_u32 s3, s3, {HT}\nv_lshl_add_u32 v26, v26, 7, s3")

    L = a.newlabel("nost0")
    a(f"s_cmp_ge_u32 {sI}, 30\ns_cbranch_scc1 {L}")
    stage(0)
    a.label(L)
    build_ws_and_nonce_load()
    a("v_lshlrev_b32 v19, 4, v1")
    setup3()
    att_setup_a()
    att_setup_b()
    setup2()
    a(f"s_cmp_ge_u32 {sI}, 30\ns_cbranch_scc1 L_T_idle")
    stage(1)
    sched = {s: [s + 2] for s in range(0, 16)}
    sched[8] = []
    sched[9] = [10]
    cu = OPT["catch"]
    for s in range(10, cu):
        sched[s] = [s + 1]
    sched[cu] = ([10] if cu == 9 else []) + [x for x in (cu + 1, cu + 2) if x != 10 and x <= 17]
    EQ = OPT["eq"]
    for s in range(0, 18):
        vm.wait(s)
        a("s_barrier")
        if s == 0:
            stamp(1)
        if 1 <= s - OPT.get("diag", 0) + 2 <= 11:
            stamp(s - OPT.get("diag", 0) + 2, True)
        if s == FB - 2:
            ln_store()
        if s == FB:
            ln_flag()
        if s == 10:
            stamp(2)
        for x in sched.get(s, []):
            if x == 8:
                vm.op("hf", f"buffer_load_dwordx2 v[28:29], v30, {sWS}, 0 offen sc1")
            if x == EQ:
                vm.op("qf", f"buffer_load_dwordx2 v[28:29], v31, {sWS}, 0 offen sc1")
            stage(x)
            if x == 17:
                break
        if 17 in sched.get(s, []):
            last = s
            break
    if EQ <= 17:
        vm.wait("qf")
        a(f"v_cmp_ne_u64 vcc, {sNONCE}, v[28:29]\ns_cbranch_vccnz L_T_late")
        log = list(vm.log)
        stamp(4)
        n0 = len(a.lines)
        att_first_loads()
        body = a.lines[n0:]
        del a.lines[n0:]
        idx = [i for i, l in enumerate(body) if l.startswith("buffer_")]
        cut = idx[11] + 1
        for s in range(last + 1, 18):
            if s == OPT["eqb"]:
                a.lines += body[:cut]
                vm.log += ["att"] * 12
            vm.wait(s)
            a("s_barrier")
        a.lines += body[cut:]
        a(f"s_setprio {OPT['aprio']}")
        stamp(3)
        a("s_branch L_att_pre")
        a.label("L_T_late")
        vm.log = log
    for s in range(last + 1, 18):
        vm.wait(s)
        a("s_barrier")
    a("s_branch L_T_att")
    a.label("L_T_idle")
    a(f"s_and_b32 s3, {sI}, 1\ns_lshl_b32 s3, s3, 2\ns_add_u32 s3, s3, {sW}\ns_lshl_b32 {sXO}, {sKQ}, 9\ns_add_u32 s3, s3, {sXO}\ns_mul_i32 s3, s3, 3072")
    a(f"s_and_b32 {sXO}, {sXCD}, 1\ns_mul_i32 {sXO}, {sXO}, 1536\ns_add_u32 {sXO}, s3, {sXO}")
    a("v_lshrrev_b32 v26, 2, v1\nv_mul_u32_u24 v26, 24576, v26\nv_and_b32 v27, 3, v1\nv_lshl_add_u32 v26, v27, 7, v26")

    def pf(n):
        g, c = n // 3, n % 3
        if OPT["pfw1"]:
            vm.op("pf", f"buffer_load_dword v{208 + n}, v26, {sW1}, {sXO} offen offset:{512 * c} {OPT.get('ntpf', '')}")
            if c == 2:
                a(f"s_add_u32 {sXO}, {sXO}, {128 * 3072}")

    n0, n1 = OPT["pf0"], OPT["pf0"] + 2
    for n in range(n0):
        pf(n)
    a("s_barrier")
    ln_store()
    for n in range(n0, n1):
        pf(n)
    vm.wait("ln")
    a("s_barrier")
    ln_flag()
    stamp(1)
    for n in range(n1, 12):
        pf(n)
        if n == 7:
            stamp(2)
    if OPT["stamps"]:
        a("s_waitcnt vmcnt(0)")
    stamp(3)


ACC = 64
ACC2 = 128
FX = lambda buf, tb: 32 + 16 * buf + 4 * tb
FW = lambda buf, cb: 40 + 16 * buf + 4 * cb
vXA = [2, 3, 4, 5]
vWA = [6, 7]
vHA = [24, 25]
vWB = [26, 27]


def tile_reads(n, mode):
    st, ks, buf = n // 4, n % 4, n & 1
    slot = (st + (10 if mode == "g1" else 0)) % 4
    wa = vWB if mode == "g1" else vWA
    r = []
    for cb in range(2):
        for p in range(2):
            r.append(f"ds_read_b64_tr_b16 {v(FW(buf, cb) + 2 * p, 2)}, {v(wa[cb])} offset:{slot * 16384 + (16 * ks + 4 * p) * 256}")
    if mode == "g1":
        x = [f"ds_read_b128 {v(FX(buf, tb), 4)}, {v(vHA[tb])} offset:{slot * 16384 + ks * 4096}" for tb in range(2)]
    else:
        x = [f"ds_read_b128 {v(FX(buf, tb), 4)}, {v(vXA[ks])} offset:{slot * 16384 + tb * 4096}" for tb in range(2)]
    return [r[0], r[1], x[0], x[1], r[2], r[3]]


def epi_atom(k):
    cb, tb = [(0, 0), (0, 1), (1, 1), (1, 0)][k >> 1]
    d = ACC + 16 * (2 * cb + tb) + 8 * (k & 1)
    p1 = [f"v_pk_mul_f32 {v(d + r, 2)}, {v(d + r, 2)}, s[72:73]" for r in range(0, 8, 2)]
    p2 = [f"v_cvt_pk_bf16_f32 {v(d + r)}, {v(d + 2 * r)}, {v(d + 2 * r + 1)}" for r in range(4)]
    p2.append(f"buffer_store_dwordx4 {v(d, 4)}, v15, {sWS}, s16 offen sc1")
    if k < 7:
        p2.append(f"s_add_u32 s16, s16, {['s17', 's18', 's17', 's19', 's17', 's21', 's17'][k]}")
    return p1, p2


def tile_loop(mode):
    N = 32 if mode == "g1" else 40
    acc = ACC2 if mode == "g1" else ACC
    for r in tile_reads(0, mode):
        a(r)
    for n in range(N):
        buf = n & 1
        rd = tile_reads(n + 1, mode) if n < N - 1 else []
        a("s_waitcnt lgkmcnt(0)")
        for q, (cb, tb) in enumerate([(0, 0), (0, 1), (1, 1), (1, 0)]):
            d = acc + 16 * (2 * cb + tb)
            c = "0" if (n == 0 and not (mode == "g1" and q == 0)) else None
            if mode == "v":
                mfma32(d, FX(buf, tb), FW(buf, cb), c)
            else:
                mfma32(d, FW(buf, cb), FX(buf, tb), c)
            if q == 0 and n % 4 == 3 and n < N - 1:
                bn = n // 4 + 1 + (10 if mode == "g1" else 0)
                if bn == FB or bn == OPT["qb"]:
                    a("s_waitcnt vmcnt(0)")
                a("s_barrier")
            if q == 0 and n == N - 1 and mode == "g1":
                lds_arrive(C_R, vCN, vONE)
            if q < 2:
                for r in rd[3 * q:3 * q + 3]:
                    a(r)
            if mode == "g1" and q >= 2 and n % OPT["estep"] == 0 and OPT["epre"] + n // OPT["estep"] < 8:
                assert n < 4 * (OPT["qb"] - 10) - 1
                for x in epi_atom(OPT["epre"] + n // OPT["estep"])[q - 2]:
                    a(x)
            if q == 2 and mode == "g1" and n % 4 == 3 and n // 4 + 11 == OPT["qb"]:
                L = a.newlabel("nq")
                a(f"s_cmp_lg_u32 {sW}, 0\ns_cbranch_scc1 {L}")
                a(f"s_mov_b64 exec, 1\nbuffer_store_dwordx2 v[28:29], v30, {sWS}, 0 offen sc1\ns_mov_b64 exec, -1")
                a.label(L)


def half_sum(xs, ts):
    for rot in (8, 4, 2, 1):
        for x in xs:
            a(f"v_add_f32_dpp {v(x)}, {v(x)}, {v(x)} row_ror:{rot} row_mask:0xf bank_mask:0xf")
    for x, t in zip(xs, ts):
        a(f"v_mov_b32 {v(t)}, {v(x)}")
    for x, t in zip(xs, ts):
        a(f"v_permlane16_swap_b32 {v(t)}, {v(x)}")
    for x, t in zip(xs, ts):
        a(f"v_add_f32 {v(x)}, {v(x)}, {v(t)}")


def m_front():
    a.label("L_M")
    stamp(0)
    a(f"v_mov_b32 {v(vCN)}, {CNT}\nv_mov_b32 {v(vONE)}, 1")
    a(f"v_mov_b32 v16, 0\nv_lshl_add_u32 v17, v1, 2, {v(vCN)}")
    L = a.newlabel("nz")
    a(f"s_cmp_lg_u32 {sW8}, 0\ns_cbranch_scc1 {L}")
    a("s_mov_b64 exec, 0xffff\nds_write_b32 v17, v16\ns_mov_b64 exec, -1")
    a.label(L)
    g1_tile()
    srd(sB1, 26, 3072)
    srd(sW2, 28, 1536 * 4096)
    srd(sWO, 20, 640 * 1280)
    srd(sB2, 30, 4096)
    srd(sOUT, 34, 2048 * 1280)
    a(f"s_lshr_b32 s26, {sKQ}, 1\ns_and_b32 s27, {sKQ}, 1")
    a(f"s_lshl_b32 s24, {sFT}, 1\ns_add_u32 s24, s24, s83\ns_lshl_b32 s24, s24, 1\ns_add_u32 s24, s24, s26")
    a(f"s_lshl_b32 s25, {sDT}, 1\ns_add_u32 s25, s25, s84\ns_lshl_b32 s25, s25, 1\ns_add_u32 s25, s25, s27")
    a("v_lshlrev_b32 v16, 30, v9\nv_lshl_add_u32 v16, v8, 1, v16\ns_lshl_b32 s3, s24, 6")
    a(f"buffer_load_ushort v20, v16, {sB1}, s3 offen\nv_mov_b32 v21, 0\nv_mov_b32 v22, 0x3f80\nv_mov_b32 v23, 0")
    a(f"s_mul_i32 s3, {sW}, 2560\ns_add_u32 s3, s3, {XCH}\nv_add_u32 v12, s3, v12\nv_add_u32 v13, s3, v13")
    a("v_bfe_u32 v10, v1, 1, 3\nv_xor_b32 v10, v10, v9\nv_lshlrev_b32 v10, 4, v10")
    a("s_lshl_b32 s3, s84, 13\nv_lshl_add_u32 v11, v8, 7, s3")
    for ks in range(4):
        a(f"v_xor_b32 v16, {32 * ks}, v10\nv_add_u32 {v(vXA[ks])}, v11, v16")
    a("v_bfe_u32 v10, v1, 2, 2")
    a("v_lshl_add_u32 v11, v9, 3, v10\nv_lshlrev_b32 v11, 8, v11")
    a("v_bfe_u32 v16, v1, 4, 1\nv_lshl_add_u32 v11, v16, 5, v11")
    a("v_and_b32 v16, 3, v1\nv_lshl_add_u32 v11, v16, 3, v11")
    a(f"v_add_u32 v11, {RINGB}, v11")
    a(f"s_lshl_b32 s3, s83, 1\nv_xor_b32 v16, s3, v10\nv_lshl_add_u32 {v(vWA[0])}, v16, 6, v11\nv_xor_b32 {v(vWA[1])}, 64, {v(vWA[0])}")
    a(f"s_lshl_b32 s3, s26, 6\nv_xor_b32 {v(vWB[0])}, s3, {v(vWA[0])}\nv_xor_b32 {v(vWB[1])}, s3, {v(vWA[1])}")
    a(f"s_lshl_b32 s3, s84, 1\ns_add_u32 s3, s3, s27\ns_lshl_b32 s3, s3, 9\nv_lshlrev_b32 v16, 11, v9\nv_add3_u32 {v(vHA[0])}, v16, v14, s3")
    a(f"v_xor_b32 {v(vHA[1])}, 512, {v(vHA[0])}")
    a(f"v_bfe_u32 v16, v1, 1, 1\nv_xor_b32 v16, v16, v1\nv_and_b32 v16, 1, v16\nv_mul_u32_u24 v16, 24, v16")
    a(f"s_cmp_lt_u32 {sCT}, 10\ns_cselect_b32 s3, -1, 0\nv_and_b32 v16, s3, v16\nv_xor_b32 {v(vWA[0])}, v16, {v(vWA[0])}\nv_xor_b32 {v(vWA[1])}, v16, {v(vWA[1])}")
    a("v_lshlrev_b32 v16, 2, v9\nv_sub_u32 v16, v8, v16\nv_and_b32 v17, 1, v16\nv_lshlrev_b32 v17, 4, v17\nv_lshlrev_b32 v17, v17, v22\nv_lshrrev_b32 v16, 1, v16")
    for q in range(8):
        a(f"v_cmp_eq_u32 vcc, {(16 * (q >> 2) + 8 * ((q & 3) >> 1) + 2 * (q & 1)) // 2}, v16\nv_cndmask_b32 v{192 + q}, 0, v17, vcc")
    a(f"s_lshl_b32 s3, {sCT}, 4\ns_add_u32 s3, s3, {sTT}\ns_lshl_b32 s3, s3, 4\ns_add_u32 s3, s3, {FLQ}\nv_mov_b32 v30, s3")
    a(f"s_mov_b32 s28, 0x3f803f80\nv_mov_b32 v16, 0\nv_mov_b32 v17, 0\nv_mov_b32 v18, 0\nv_mov_b32 v19, 0")
    a("s_waitcnt lgkmcnt(0)")
    make_nonce()
    a("v_mov_b32 v28, s74\nv_mov_b32 v29, s75")
    X = 160
    a("s_waitcnt vmcnt(4)")
    stamp(1)
    for r in range(10):
        a(f"v_dot2_f32_bf16 v16, {v(LNX + r)}, s28, v16")
    for r in range(10):
        a(f"v_lshlrev_b32 {v(X + 2 * r)}, 16, {v(LNX + r)}\nv_and_b32 {v(X + 2 * r + 1)}, 0xffff0000, {v(LNX + r)}")
    a("s_waitcnt vmcnt(1)")
    for r in range(10):
        a(f"v_dot2_f32_bf16 v17, {v(LNX + r)}, {v(LNG + r)}, v17")
    half_sum([16, 17], [10, 11])
    a(f"v_mul_f32 v16, {hex(f2u(-1.0 / 640))}, v16")
    a(f"v_mul_f32 v17, {hex(f2u(-math.log2(math.e)))}, v17\nv_exp_f32 v31, v17")
    for r in range(0, 20, 2):
        a(f"v_pk_add_f32 {v(X + r, 2)}, {v(X + r, 2)}, v[16:17] op_sel_hi:[1,0]")
    for r in range(0, 20, 2):
        a(f"v_pk_fma_f32 v[18:19], {v(X + r, 2)}, {v(X + r, 2)}, v[18:19]")
    a("v_add_f32 v31, 1.0, v31\nv_add_f32 v18, v18, v19\nv_rcp_f32 v31, v31")
    half_sum([18], [10])
    a(f"v_mov_b32 v16, {hex(f2u(1e-5))}\nv_fmac_f32 v16, {hex(f2u(1.0 / 640))}, v18\nv_rsq_f32 v16, v16")
    a(RB + f"s_lshl_b32 s3, {sRB}, 7\ns_lshl_b32 s85, {sW}, 3\ns_add_u32 s85, s85, s3\ns_add_u32 s85, s85, {GATE}\nv_lshlrev_b32 v10, 2, v9")
    for r in range(0, 20, 2):
        a(f"v_pk_mul_f32 {v(X + r, 2)}, {v(X + r, 2)}, v[16:17] op_sel_hi:[1,0]")
    for r in range(10):
        a(f"v_cvt_pk_bf16_f32 {v(LNX + r)}, {v(X + 2 * r)}, {v(X + 2 * r + 1)}")
    a(f"ds_write_b128 v12, {v(LNX, 4)}\nds_write_b128 v12, {v(LNX + 4, 4)} offset:512\nds_write_b64 v13, {v(LNX + 8, 2)} offset:1024")
    a("s_mov_b32 exec_lo, 1\ns_mov_b32 exec_hi, 1")
    a(f"buffer_store_dword v31, v10, {sWS}, s85 offen sc1\ns_mov_b64 exec, -1")
    a("s_waitcnt lgkmcnt(0)")
    stamp(2)
    a(f"s_setprio {OPT['mprio']}")
    a("s_barrier")
    a(f"s_cmp_ge_u32 {sI}, 30\ns_cbranch_scc1 L_M_idle")
    a(f"s_cmp_ge_u32 {sCT}, 10\ns_cbranch_scc1 L_M_v")
    a("v_lshl_add_u32 v15, v9, 15, v14")
    a(f"s_lshl_b32 s3, {sCT}, 1\ns_add_u32 s3, s3, s83\ns_lshl_b32 s3, s3, 18")
    a(f"s_lshl_b32 s16, {sTT}, 1\ns_add_u32 s16, s16, s84\ns_lshl_b32 s16, s16, 10\ns_add_u32 s16, s16, s3\ns_add_u32 s16, s16, {QK}")
    a(f"s_mov_b32 s17, 65536\ns_mov_b32 s18, {512 - 65536}\ns_mov_b32 s19, {131072 - 65536}\ns_mov_b32 s21, {-512 - 65536}")
    c = f2u(math.log2(math.e) / math.sqrt(20.0))
    a(f"s_cmp_lt_u32 {sCT}, 5\ns_cselect_b32 s72, {c}, 1.0\ns_mov_b32 s73, s72")
    tile_loop("qk")
    a("s_branch L_M_g1")
    a.label("L_M_v")
    a("v_mul_u32_u24 v15, 4352, v9\ns_lshl_b32 s3, s83, 10\nv_add3_u32 v15, v15, v14, s3")
    a(f"s_lshl_b32 s16, {sCT}, 5\ns_lshl_b32 s3, {sTT}, 1\ns_add_u32 s16, s16, s3\ns_add_u32 s16, s16, s84")
    a(f"s_mul_i32 s16, s16, {2 * 8704}\ns_add_u32 s16, s16, {VV - 10 * VCT}")
    a(f"s_mov_b32 s17, 2176\ns_mov_b32 s18, {8704 - 2176}\ns_mov_b32 s19, {512 - 2176}\ns_mov_b32 s21, {-8704 - 2176}")
    a("s_mov_b32 s72, 1.0\ns_mov_b32 s73, 1.0")
    L = a.newlabel("noones")
    a(f"s_cmp_lg_u32 s83, 0\ns_cbranch_scc1 {L}")
    a("v_lshrrev_b32 v11, 3, v1\nv_mul_u32_u24 v11, 2176, v11\nv_and_b32 v12, 7, v1\nv_lshl_add_u32 v11, v12, 4, v11")
    for r in range(4):
        a(f"v_mov_b32 v{16 + r}, 0x3f803f80")
    a(f"buffer_store_dwordx4 v[16:19], v11, {sWS}, s16 offen offset:2048 sc1")
    a.label(L)
    tile_loop("v")
    a.label("L_M_g1")
    stamp(3)
    mfma32k8(ACC2, 20, 22, "0")
    for k in range(OPT["epre"]):
        for part in epi_atom(k):
            for x in part:
                a(x)
    stamp(4)
    a("s_barrier")
    tile_loop("g1")
    stamp(5)


vD = [2, 3, 4, 5]
vR = [6, 7, 24, 25]
vU, vFU, vKQ, vL15, vA1, vA2 = 30, 31, 26, 27, 28, 29
vWOG = [48, 49, 50, 51, 52]
sSB, sDB, sWOFF, sUOFF, sM0, sWOO = "s30", "s31", "s18", "s19", "s23", "s32"
SEL = 192


def tail_setup():
    a(f"s_lshl_b32 {sSB}, {sXCD}, 2\ns_lshr_b32 s33, {sI}, 3\ns_add_u32 {sSB}, {sSB}, s33\ns_and_b32 {sDB}, {sI}, 7\ns_lshl_b32 {sM0}, {sW}, 15")
    a(f"v_lshrrev_b32 {v(vKQ)}, 4, v1\nv_and_b32 {v(vL15)}, 15, v1")
    a(f"s_mul_i32 s85, {sW}, {384 * 4096}\ns_lshl_b32 s3, {sSB}, 7\ns_add_u32 s3, s3, s85")
    a(f"v_lshrrev_b32 v10, 3, v1\nv_lshlrev_b32 v10, 12, v10\nv_lshlrev_b32 v11, 1, {v(vKQ)}\nv_and_b32 v12, 7, v1\nv_xor_b32 v11, v11, v12")
    a(f"v_lshlrev_b32 v11, 4, v11\nv_add3_u32 {v(vD[0])}, v10, v11, s3")
    for j in range(1, 4):
        a(f"v_add_u32 {v(vD[j])}, {j * (8 * 4096 - 1024)}, {v(vD[0])}")
    a("v_bfe_u32 v10, v1, 2, 3")
    a("v_lshl_add_u32 v11, v9, 4, v10\nv_lshlrev_b32 v11, 7, v11")
    a(f"v_and_b32 v12, 3, v1\nv_lshlrev_b32 v12, 3, v12\nv_add3_u32 v11, v11, v12, {sM0}")
    a(f"v_lshrrev_b32 v13, 1, v10\nv_xor_b32 v13, {sW}, v13\nv_lshl_add_u32 {v(vR[0])}, v13, 5, v11")
    for sb in range(1, 4):
        a(f"v_xor_b32 {v(vR[sb])}, {32 * sb}, {v(vR[0])}")
    a(f"v_mul_u32_u24 v11, 20, v9\nv_add_u32 v11, v10, v11\nv_mul_u32_u24 v11, 160, v11\nv_add3_u32 {v(vA1)}, v11, v12, {sM0}")
    a(f"v_bfe_u32 v10, v1, 2, 2\nv_mul_u32_u24 v11, 20, {v(vKQ)}\nv_add3_u32 v10, v10, v11, 16\nv_mul_u32_u24 v10, 160, v10\nv_add3_u32 {v(vA2)}, v10, v12, {sM0}")
    a(f"s_mul_i32 s85, {sW}, {12 * 40960}\ns_mul_i32 s3, {sDB}, 1280\ns_add_u32 s3, s3, s85\ns_add_u32 s3, s3, {UU}")
    a(f"v_mul_u32_u24 v10, 10240, {v(vKQ)}\nv_lshlrev_b32 v11, 4, {v(vL15)}\nv_add3_u32 {v(vU)}, v10, v11, s3")
    if OPT["rot3"]:
        a(f"s_lshl_b32 s3, s33, 1\ns_add_u32 s3, s3, {sDB}\ns_mul_i32 s3, s3, 3\ns_lshr_b32 s3, s3, 1\ns_sub_u32 s85, s3, 12\ns_cmp_ge_u32 s3, 12\ns_cselect_b32 s3, s85, s3")
        a(f"s_lshl_b32 {sWOFF}, s3, 17\ns_mul_i32 {sUOFF}, s3, 40960")
    else:
        a(f"s_mov_b32 {sWOFF}, 0\ns_mov_b32 {sUOFF}, 0")
    a("v_mul_u32_u24 v10, 43, v1\nv_lshrrev_b32 v10, 9, v10\nv_mul_u32_u24 v11, 12, v10\nv_sub_u32 v11, v1, v11\nv_min_u32 v10, 2, v10")
    a(f"s_mul_i32 s3, {sDB}, 80\ns_lshr_b32 s3, s3, 5\nv_add_u32 v10, s3, v10\nv_mul_u32_u24 v10, 48, v10")
    a(f"s_mul_i32 s3, {sW}, 12\nv_add3_u32 v10, v10, v11, s3\nv_lshlrev_b32 v10, 4, v10\nv_add_u32 {v(vFU)}, {FLU}, v10")
    a(f"s_mul_i32 s85, {sW}, {160 * 1280}\ns_mul_i32 s3, {sDB}, 160\ns_add_u32 s3, s3, s85")
    for j in range(5):
        a(f"v_add_u32 v10, {64 * j}, v1\nv_mul_u32_u24 v11, 205, v10\nv_lshrrev_b32 v11, 11, v11\nv_mul_u32_u24 v11, {1280 - 160}, v11")
        if j < 4:
            a(f"v_lshlrev_b32 v10, 4, v1")
        else:
            a(f"v_lshlrev_b32 v10, 4, v10")
        a(f"v_add3_u32 {v(vWOG[j])}, v10, v11, s3")


def wo_group(g):
    if g < 4:
        a(f"s_add_u32 s3, s33, {g}\ns_and_b32 s3, s3, 3\ns_mul_i32 {sWOO}, s3, {32 * 1280}\ns_mul_i32 s3, s3, 5120\ns_add_u32 s3, s3, {sM0}")
    else:
        a(f"s_mov_b32 {sWOO}, {4 * 32 * 1280}\ns_add_u32 s3, {sM0}, {4 * 5120}")
    dma_group(vWOG[:4], sWO, sWOO, "s3", OPT["ntwo"])
    dma_group(vWOG[4:], sWO, sWOO, ("s3", 4096), OPT["ntwo"])


def m_mid():
    for k in (1, 3, 2):
        d = ACC2 + 16 * k
        for r in range(8):
            a(f"v_cvt_pk_bf16_f32 {v(d + r)}, {v(d + 2 * r)}, {v(d + 2 * r + 1)}")
    a(f"s_setprio {OPT['gprio_v']}")
    tail_setup()
    a(f"s_mul_i32 s16, {sFT}, 5\ns_add_u32 s16, s16, {sDT}\ns_lshl_b32 s16, s16, 2\nv_lshlrev_b32 v10, 4, v1")
    a(f"s_add_u32 s17, s16, {sKQ}\ns_lshl_b32 s17, s17, 2\ns_add_u32 s17, s17, {sW}")
    a(f"s_lshl_b32 s3, s16, 2\ns_add_u32 s3, s3, {sW}\ns_lshl_b32 s3, s3, 6\ns_add_u32 s3, s3, {FLP}")
    a("v_and_b32 v11, 3, v1\nv_lshl_add_u32 v11, v11, 8, s3")
    lds_wait(C_R, 8 if OPT["waitts"] else 4, vCN, 16, sleep=2)
    a(f"s_setprio {OPT['gprio_m']}")
    for k in (1, 3, 2):
        a(f"s_xor_b32 s3, {sKQ}, {k}\ns_add_u32 s3, s3, s16\ns_lshl_b32 s3, s3, 2\ns_add_u32 s3, s3, {sW}\ns_mul_i32 s3, s3, 6144\ns_add_u32 s3, s3, {PB + 2048 * (k - 1)}")
        for q in range(2):
            a(f"buffer_store_dwordx4 {v(ACC2 + 16 * k + 4 * q, 4)}, v10, {sWS}, s3 offen offset:{1024 * q} sc1")
    a(f"s_lshl_b32 s85, s17, 6\ns_add_u32 s85, s85, {FLP}")
    a(f"s_waitcnt vmcnt(0)\ns_setprio {OPT['gprio_v']}")
    set_flag("s85", 16)
    a(f"s_setprio {OPT['gprio_m']}")
    a(f";@thr {OPT['thr']}")
    wo_group(0)
    a(f"s_setprio {OPT['gprio_v']}")
    poll(11, 12, sleep=4)
    a(f"s_setprio {OPT['gprio_m']}")
    a(f"s_mul_i32 s3, s17, 6144\ns_add_u32 s3, s3, {PB}")
    for k in (1, 2, 3):
        for q in range(2):
            a(f"buffer_load_dwordx4 {v(ACC2 + 16 * k + 4 * q, 4)}, v10, {sWS}, s3 offen offset:{1024 * q} sc1")
        a("s_add_u32 s3, s3, 2048")
    wo_group(1)
    a(f"s_waitcnt vmcnt(5)\ns_setprio {OPT['gprio_v']}")
    A0, T0 = ACC2, ACC2 + 16
    for k in (1, 2, 3):
        for q in range(2):
            mfma32(A0, SEL + 4 * q, A0 + 16 * k + 4 * q)
    c1 = -2.0 * math.sqrt(2.0 / math.pi) * math.log2(math.e)
    c2 = c1 * 0.044715
    a(f"s_mov_b32 s26, {hex(f2u(c2))}\ns_mov_b32 s27, {hex(f2u(c2))}\nv_mov_b32 v16, {hex(f2u(c1))}\nv_mov_b32 v17, {hex(f2u(c1))}")
    for r in range(0, 16, 2):
        a(f"v_pk_mul_f32 {v(T0 + r, 2)}, {v(A0 + r, 2)}, {v(A0 + r, 2)}")
    for r in range(0, 16, 2):
        a(f"v_pk_fma_f32 {v(T0 + r, 2)}, {v(T0 + r, 2)}, s[26:27], v[16:17]")
    for r in range(0, 16, 2):
        a(f"v_pk_mul_f32 {v(T0 + r, 2)}, {v(T0 + r, 2)}, {v(A0 + r, 2)}")
    for r in range(16):
        a(f"v_exp_f32 {v(T0 + r)}, {v(T0 + r)}")
    for r in range(0, 16, 2):
        a(f"v_pk_add_f32 {v(T0 + r, 2)}, {v(T0 + r, 2)}, 1.0 op_sel_hi:[1,0]")
    for r in range(16):
        a(f"v_rcp_f32 {v(T0 + r)}, {v(T0 + r)}")
    for r in range(0, 16, 2):
        a(f"v_pk_mul_f32 {v(A0 + r, 2)}, {v(A0 + r, 2)}, {v(T0 + r, 2)}")
    for r in range(8):
        a(f"v_cvt_pk_bf16_f32 {v(A0 + r)}, {v(A0 + 2 * r)}, {v(A0 + 2 * r + 1)}")
    a("v_mul_u32_u24 v10, 10240, v9\nv_add_u32 v10, v10, v14")
    a(f"s_mul_i32 s85, s24, 40960\ns_lshl_b32 s3, s25, 9\ns_add_u32 s85, s85, s3\ns_add_u32 s85, s85, {UU}\ns_add_u32 s3, s85, 20480")
    a(f"buffer_store_dwordx4 {v(A0, 4)}, v10, {sWS}, s85 offen sc1")
    a(f"buffer_store_dwordx4 {v(A0 + 4, 4)}, v10, {sWS}, s3 offen sc1")
    a(f"s_mul_i32 s85, s25, 48\ns_add_u32 s85, s85, s24\ns_lshl_b32 s85, s85, 4\ns_add_u32 s85, s85, {FLU}")
    a(f"s_setprio {OPT['gprio_m']}")
    wo_group(2)
    a(f"s_waitcnt vmcnt(5)\ns_setprio {OPT['gprio_v']}")
    set_flag("s85", 16)
    a("s_branch L_M_j")
    a.label("L_M_idle")
    a(f"s_waitcnt vmcnt(0)\ns_barrier")
    tail_setup()
    a(f"s_setprio {OPT['gprio_v']}")
    lds_wait(C_R, 4, vCN, 16, sleep=8)
    a(f"s_setprio {OPT['gprio_m']}")
    for g in range(3):
        wo_group(g)
    a.label("L_M_j")
    a(f"s_setprio {OPT['gprio_v']}")
    a(f"s_lshl_b32 s24, {sSB}, 2\ns_add_u32 s24, s24, {sW}")
    a(f"v_lshrrev_b32 v10, 3, {v(vL15)}\nv_lshlrev_b32 v10, 7, v10\nv_and_b32 v11, 7, {v(vL15)}\nv_lshl_add_u32 v10, v11, 2, v10\nv_lshlrev_b32 v11, 1, {v(vL15)}")


def dma_group(vregs, srdn, soff, m0base, fl=""):
    a(f"s_mov_b32 m0, {m0base}" if not isinstance(m0base, tuple) else f"s_add_u32 m0, {m0base[0]}, {m0base[1]}")
    for j, r in enumerate(vregs):
        a(f"buffer_load_dwordx4 {v(r)}, {srdn}, {soff} offen offset:{1024 * j} {fl} lds")


OO = lambda c: 128 + 16 * c
SS = lambda b: 192 + 16 * b
PP = 224
Q1 = lambda c: 32 + 6 * c
Q2 = lambda c: 36 + 6 * c
MM = lambda c: 56 + c
vK1, vK2, vV = 60, 61, 62
KB = lambda b: 64 + 14 * b
sK, sKb, sV, sLOOP, sMODE, sH = "s16", "s17", "s18", "s19", "s20", "s21"
sQT = "s34"


def kv_loads(b, koff):
    B = KB(b)
    return [
        f"buffer_load_dwordx4 {v(B, 4)}, {v(vK1)}, {sWS}, {sK} offen offset:{koff} sc1",
        f"buffer_load_dword {v(B + 4)}, {v(vK2)}, {sWS}, {sK} offen offset:{koff} sc1",
        f"buffer_load_dwordx4 {v(B + 6, 4)}, {v(vV)}, {sWS}, {sV} offen sc1",
        f"buffer_load_dwordx4 {v(B + 10, 4)}, {v(vV)}, {sWS}, {sV} offen offset:2176 sc1",
    ]


def maxbody():
    T = [192, 208, 224, 8]
    for c in range(4):
        mfma32(T[c], KB(0), Q1(c), "0")
        mfma32k8(T[c], KB(0) + 4, Q2(c))
    for c in range(4):
        for r in range(0, 16, 2):
            a(f"v_max3_f32 {v(MM(c))}, {v(MM(c))}, {v(T[c] + r)}, {v(T[c] + r + 1)}")


def att_slot(tl, extra):
    c, b = tl & 3, (tl >> 2) & 3
    cn, bn = (tl + 1) & 3, ((tl + 1) >> 2) & 3
    cp, bp = (tl - 1) & 3, ((tl - 1) >> 2) & 3
    S, Sn = SS(tl & 1), SS((tl + 1) & 1)
    ms = [
        lambda: mfma32(Sn, KB(bn), Q1(cn), "0"),
        lambda: mfma32k8(Sn, KB(bn) + 4, Q2(cn)),
        lambda: mfma32(OO(cp), KB(bp) + 10, PP + 4),
        lambda: mfma32(OO(c), KB(b) + 6, PP),
    ]
    for q in range(4):
        ms[q]()
        for x in extra.get(q, []):
            a(x)
        for r in range(4):
            a(f"v_exp_f32 {v(S + 4 * q + r)}, {v(S + 4 * q + r)}")
        for r in range(2):
            a(f"v_cvt_pk_bf16_f32 {v(PP + 2 * q + r)}, {v(S + 4 * q + 2 * r)}, {v(S + 4 * q + 2 * r + 1)}")


def att_setup_a():
    a(f"s_lshl_b32 {sH}, {sXCD}, 2\ns_lshr_b32 s3, {sI}, 3\ns_add_u32 {sH}, {sH}, s3")
    a(f"s_and_b32 {sQT}, {sI}, 7\ns_lshl_b32 {sQT}, {sQT}, 1\ns_add_u32 {sQT}, {sQT}, s84")
    a(f"s_mul_i32 s23, {sH}, 20\ns_add_u32 s35, s23, 19\ns_lshr_b32 s33, s23, 7\ns_lshr_b32 s35, s35, 7")
    a("v_bfe_u32 v22, v1, 3, 1\ns_sub_u32 s3, s35, s33\nv_mul_u32_u24 v22, s3, v22\nv_add_u32 v22, s33, v22")
    a("v_lshrrev_b32 v23, 4, v1\nv_add_u32 v23, 1, v23\nv_mul_u32_u24 v23, 5, v23")
    a("v_and_b32 v24, 7, v1\ns_lshl_b32 s3, s83, 3\nv_add_u32 v24, s3, v24")
    a(f"v_cmp_gt_u32 vcc, 32, v1\nv_mov_b32 v25, {sQT}")
    a("v_cndmask_b32 v23, 0, v23, vcc\nv_cndmask_b32 v24, v25, v24, vcc")
    a("v_add_u32 v22, v22, v23\nv_lshl_add_u32 v22, v22, 4, v24\nv_lshlrev_b32 v22, 4, v22")
    a(f"v_add_u32 v31, {FLQ}, v22")
    a("v_and_b32 v20, 31, v1\nv_lshrrev_b32 v21, 5, v1")
    a(f"s_and_b32 s3, {sH}, 1\nv_add_u32 v22, s3, v21\nv_lshlrev_b32 v22, 15, v22\nv_lshl_add_u32 {v(vK1)}, v20, 4, v22")
    a(f"s_cmp_eq_u32 s3, 0\ns_cselect_b32 s3, 0x10000, 8\nv_lshlrev_b32 v22, 2, v21\nv_lshl_add_u32 v22, v20, 4, v22\nv_add_u32 {v(vK2)}, s3, v22")
    a(f"s_lshl_b32 s29, {sQT}, 1\ns_add_u32 s29, s29, s83")
    a(f"v_lshrrev_b32 v22, 3, v20\nv_lshlrev_b32 v22, 7, v22\nv_and_b32 v23, 7, v1\nv_lshl_add_u32 v22, v23, 2, v22")
    a(f"s_lshl_b32 s3, s29, 10\ns_add_u32 s3, s3, {GATE}\nv_add_u32 v63, s3, v22")
    a(f"s_lshl_b32 s3, s29, 7\ns_add_u32 s3, s3, {FLH}\nv_lshl_add_u32 v22, v23, 4, s3\nv_cmp_gt_u32 vcc, 48, v1\nv_cndmask_b32 v31, v22, v31, vcc")
    a("v_add_u32 v22, s23, v20\nv_lshrrev_b32 v23, 7, v22\nv_and_b32 v22, 127, v22")
    a("v_cmp_gt_u32 vcc, 20, v20\nv_mov_b32 v24, s33\nv_mov_b32 v25, 128")
    a("v_cndmask_b32 v23, v24, v23, vcc\nv_cndmask_b32 v22, v25, v22, vcc")
    a(f"v_mul_u32_u24 v23, {VCT}, v23\nv_lshl_add_u32 v23, v22, 4, v23\nv_mul_u32_u24 v24, 4352, v21\nv_add_u32 {v(vV)}, v23, v24")
    if OPT.get("zrows", 1):
        a(f"s_mov_b32 s30, {hex(0xeef00000)}\ns_mov_b32 s31, {hex(0xeef00000)}\nv_mov_b32 v24, 0x80000000")
        a(f"v_cndmask_b32 {v(vV)}, {v(vV)}, v24, s[30:31]")
    a(f"s_mul_i32 s26, {sH}, 5\ns_lshr_b32 s26, s26, 1\ns_lshl_b32 s26, s26, 15\ns_add_u32 s26, s26, {QK}")
    a(f"s_lshl_b32 s3, s83, 14\ns_add_u32 s27, s26, s3\ns_add_u32 s27, s27, {80 * 32768}")
    a(f"s_lshl_b32 s3, {sQT}, 11\ns_add_u32 s26, s26, s3")
    a(f"s_mul_i32 s28, s83, {32 * 8704}\ns_add_u32 s28, s28, {VV}")
    a(f"s_mov_b32 {sMODE}, 0")


def att_setup_b():
    for b in range(4):
        a(f"v_mov_b32 {v(KB(b) + 5)}, 0x3f803f80")
    for r in range(64):
        a(f"v_mov_b32 {v(OO(0) + r)}, 0")


def att_init_m():
    for c in range(4):
        a(f"v_mov_b32 {v(Q2(c) + 1)}, 0\nv_mov_b32 {v(MM(c))}, 0xff800000")


def att_kv_first():
    a(f"s_and_b32 s3, {sI}, {7 if OPT['rotk'] else 0}\ns_lshl_b32 {sK}, s3, 11\ns_add_u32 {sK}, {sK}, s27\ns_mul_i32 {sV}, s3, {4 * 8704}\ns_add_u32 {sV}, {sV}, s28")
    a(f"s_add_u32 {sKb}, s27, {32 * 512}")
    for b in range(3):
        for x in kv_loads(b, 512 * b):
            a(x)
        a(f"s_add_u32 {sV}, {sV}, 8704")
    for r in range(4):
        a(f"v_mov_b32 {v(KB(3) + 10 + r)}, 0")


def att_first_loads():
    a("s_lshl_b32 s3, s83, 10\ns_add_u32 s29, s26, s3\ns_xor_b32 s3, s3, 1024\ns_add_u32 s30, s26, s3")
    for c in range(4):
        s0 = "s29" if c < 2 else "s30"
        off = 512 * (c & 1)
        a(f"buffer_load_dwordx4 {v(Q1(c), 4)}, {v(vK1)}, {sWS}, {s0} offen offset:{off} sc1")
        a(f"buffer_load_dword {v(Q2(c))}, {v(vK2)}, {sWS}, {s0} offen offset:{off} sc1")
    a(f"buffer_load_dword v120, v63, {sWS}, 0 offen sc1\nbuffer_load_dword v121, v63, {sWS}, 0 offen offset:512 sc1")
    att_init_m()
    att_kv_first()


def t_att():
    a.label("L_T_att")
    a(f"s_setprio {OPT['aprio']}")
    stamp(3)
    poll(31, 28, sleep=OPT["qsleep"])
    stamp(4)
    att_first_loads()
    a("s_branch L_att_pre")
    a.label("L_att_start")
    att_init_m()
    a(f"s_add_u32 {sK}, s27, {31 * 512}")
    a.label("L_att_max")
    for x in kv_loads(0, 0)[:2]:
        a(x)
    a("s_waitcnt vmcnt(0)")
    maxbody()
    a(f"s_sub_u32 {sK}, {sK}, 512\ns_cmp_ge_u32 {sK}, s27\ns_cbranch_scc1 L_att_max")
    for r in range(64):
        a(f"v_mov_b32 {v(OO(0) + r)}, 0")
    att_kv_first()
    a.label("L_att_pre")
    a("s_waitcnt vmcnt(10)")
    lds_arrive(C_R, vCN, vONE)
    stamp(5)
    maxbody()
    a("v_cmp_gt_u32 vcc, 32, v1")
    for c in range(4):
        a(f"v_mov_b32 v{2 + c}, {v(MM(c))}")
    for c in range(4):
        a(f"v_permlane32_swap_b32 v{2 + c}, {v(MM(c))}")
    for c in range(4):
        a(f"v_max_f32 {v(MM(c))}, v{2 + c}, {v(MM(c))}")
    for c in range(4):
        a(f"v_and_b32 v{2 + c}, 0xffff0000, {v(MM(c))}")
    for c in range(4):
        a(f"v_sub_f32 v{8 + c}, {v(MM(c))}, v{2 + c}")
    for c in range(4):
        a(f"v_and_b32 v{12 + c}, 0xffff0000, v{8 + c}")
    for c in range(4):
        a(f"v_sub_f32 v{8 + c}, v{8 + c}, v{12 + c}")
    for c in range(4):
        a(f"v_cvt_pk_bf16_f32 v{2 + c}, -v{2 + c}, -v{12 + c}")
    for c in range(4):
        a(f"v_cvt_pk_bf16_f32 v{8 + c}, -v{8 + c}, 0")
    for c in range(4):
        a(f"v_cndmask_b32 {v(Q2(c) + 1)}, v{8 + c}, v{2 + c}, vcc")
    mfma32(SS(0), KB(0), Q1(0), "0")
    mfma32k8(SS(0), KB(0) + 4, Q2(0))
    for r in range(4):
        a(f"v_mov_b32 {v(PP + 4 + r)}, 0")
    a(f"s_mov_b32 {sLOOP}, 8\ns_waitcnt vmcnt(8)\ns_nop 7")
    stamp(6)
    cstamp(10)
    a(".p2align 6")
    a(";@hot")
    a.label("L_att_loop")
    for tl in range(16):
        j, c = tl >> 2, tl & 3
        ld = kv_loads((j + 3) & 3, 512 * ((j + 3) & 3))
        if OPT.get("x_noload"):
            ld = ["s_nop 0"] * 4
        extra = {}
        if c == 0:
            extra = {0: [ld[0]], 3: [ld[1]]}
        elif c == 1:
            extra = {0: [ld[2]], 3: [ld[3]]}
        elif c == 2:
            extra = {0: [f"s_add_u32 {sV}, {sV}, 8704"], 3: ["s_waitcnt vmcnt(8)"]}
            if j == 0:
                extra[2] = [f"s_add_u32 {sK}, {sK}, 2048"]
        elif c == 3 and j == 0:
            extra = {0: [f"s_cmp_eq_u32 {sK}, {sKb}"], 2: [f"s_cselect_b32 {sK}, s27, {sK}"], 3: [f"s_cselect_b32 {sV}, s28, {sV}"]}
        elif c == 3 and j == 3:
            extra = {0: [f"s_sub_u32 {sLOOP}, {sLOOP}, 1"], 2: [f"s_cmp_lg_u32 {sLOOP}, 0"]}
        att_slot(tl, extra)
    a("s_cbranch_scc1 L_att_loop")
    a(";@endhot")
    mfma32(OO(3), KB(3) + 10, PP + 4)
    stamp(7)
    cstamp(11)
    a("s_waitcnt vmcnt(0)")
    a(f"v_max3_f32 v2, {v(OO(0) + 12)}, {v(OO(1) + 12)}, {v(OO(2) + 12)}\nv_max_f32 v2, v2, {v(OO(3) + 12)}")
    a(f"v_cmp_lt_f32 vcc, {hex(f2u(2.0 ** 30 if not OPT['force_fb'] else 0.0))}, v2\ns_cbranch_vccz L_att_ok")
    if OPT.get("x_noload"):
        a("s_branch L_att_ok")
    a(f"s_cmp_lg_u32 {sMODE}, 0\ns_cbranch_scc1 L_att_ok\ns_mov_b32 {sMODE}, 1\ns_branch L_att_start")
    a.label("L_att_ok")
    lds_arrive(C_TD, vCN, vONE)
    a(f"s_mul_i32 s3, {sW}, 7168\ns_add_u32 s3, s3, {XCH}\nv_lshl_add_u32 v2, v1, 4, s3\nv_lshl_add_u32 v3, v1, 3, s3")
    a(f"s_xor_b32 s29, {sW}, 1\ns_mul_i32 s29, s29, 7168\ns_add_u32 s29, s29, {XCH}\nv_lshl_add_u32 v4, v1, 4, s29\nv_lshl_add_u32 v5, v1, 3, s29")
    for k in range(2):
        a(f"v_mov_b32 {v(OO(2 + k) + 13)}, {v(MM(2 + k))}")
        for q in range(3):
            a(f"ds_write_b128 v2, {v(OO(2 + k) + 4 * q, 4)} offset:{3584 * k + 1024 * q}")
        a(f"ds_write_b64 v3, {v(OO(2 + k) + 12, 2)} offset:{3584 * k + 3072}")
    a(f"s_lshl_b32 s3, s84, 2\nv_add_u32 v6, s3, {v(vCN)}")
    lds_arrive(C_O0, 6, vONE)
    a("v_and_b32 v8, 31, v1\nv_lshrrev_b32 v9, 5, v1")
    a("v_lshlrev_b32 v10, 15, v9\nv_lshl_add_u32 v10, v8, 4, v10")
    a("v_lshlrev_b32 v11, 31, v9\nv_lshl_add_u32 v11, v8, 3, v11")
    a(f"s_lshl_b32 s30, {sQT}, 1\ns_add_u32 s30, s30, s83")
    a(f"s_lshl_b32 s31, {sH}, 16\ns_lshl_b32 s3, s30, 10\ns_add_u32 s31, s31, s3\ns_add_u32 s31, s31, {O1}")
    a(f"s_lshl_b32 s32, {sH}, 14\ns_lshl_b32 s3, s30, 9\ns_add_u32 s32, s32, s3\ns_add_u32 s32, s32, {O2}")
    a(f"s_lshl_b32 s33, s30, 5\ns_add_u32 s33, s33, {sH}\ns_lshl_b32 s33, s33, 7\ns_add_u32 s33, s33, {FLO}")
    lds_wait(C_O0, 2, 6, 7, sleep=0)
    R = lambda k: 64 + 16 * k
    for k in range(2):
        a(f"ds_read_b64 {v(R(k) + 12, 2)}, v5 offset:{3584 * k + 3072}")
    for k in range(2):
        for q in range(3):
            a(f"ds_read_b128 {v(R(k) + 4 * q, 4)}, v4 offset:{3584 * k + 1024 * q}")
    a("s_waitcnt lgkmcnt(6)")
    for k in range(2):
        t = 12 + 4 * k
        a(f"v_max_f32 v{t}, {v(MM(k))}, {v(R(k) + 13)}")
        a(f"v_sub_f32 v{t + 2}, {v(R(k) + 13)}, v{t}\nv_sub_f32 v{t}, {v(MM(k))}, v{t}")
        a(f"v_exp_f32 v{t}, v{t}\nv_exp_f32 v{t + 2}, v{t + 2}")
    for k in range(2):
        t = 12 + 4 * k
        a(f"v_mul_f32 v{t + 1}, v{t}, {v(OO(k) + 12)}\nv_fma_f32 v{t + 1}, v{t + 2}, {v(R(k) + 12)}, v{t + 1}")
        a(f"v_rcp_f32 v{t + 1}, v{t + 1}")
    for k in range(2):
        t = 12 + 4 * k
        a(f"v_mul_f32 v{t + 1}, v{120 + k}, v{t + 1}\nv_mul_f32 v{t}, v{t}, v{t + 1}\nv_mul_f32 v{t + 2}, v{t + 2}, v{t + 1}")
    for k in range(2):
        t = 12 + 4 * k
        a(f"s_waitcnt lgkmcnt({3 * (1 - k)})")
        for r in range(0, 12, 2):
            a(f"v_pk_mul_f32 {v(OO(k) + r, 2)}, {v(OO(k) + r, 2)}, {v(t, 2)} op_sel_hi:[1,0]")
        for r in range(0, 12, 2):
            a(f"v_pk_fma_f32 {v(OO(k) + r, 2)}, {v(R(k) + r, 2)}, {v(t + 2, 2)}, {v(OO(k) + r, 2)} op_sel_hi:[1,0,1]")
        for r in range(6):
            a(f"v_cvt_pk_bf16_f32 {v(OO(k) + r)}, {v(OO(k) + 2 * r)}, {v(OO(k) + 2 * r + 1)}")
        a(f"buffer_store_dwordx4 {v(OO(k), 4)}, v10, {sWS}, s31 offen offset:{512 * k} sc1")
        a(f"buffer_store_dwordx2 {v(OO(k) + 4, 2)}, v11, {sWS}, s32 offen offset:{256 * k} sc1")
    stamp(8)
    a("s_waitcnt vmcnt(0)")
    set_flag("s33", 16)
    stamp(9)
    dump_stamps()
    a("s_endpgm")


def m_tail():
    GA = lambda sb, blk: 64 + 20 * sb + 4 * blk
    UB = lambda slot, blk: 144 + 20 * slot + 4 * blk
    WF = lambda sb: 32 + 4 * sb
    WB = lambda t, blk: 144 + 20 * t + 4 * blk
    OF = lambda buf, sb: 16 + 16 * buf + 4 * sb
    W2R = 20480
    LA = 2
    vm = VM()

    def w2_ops(st):
        ops = [[f"s_add_u32 m0, {sM0}, {W2R + 4096 * (st % 3)}", "s_nop 0"], [], [], []]
        for j in range(4):
            ops[j].append(("w", st, f"buffer_load_dwordx4 {v(vD[j])}, {sW2}, {sWOFF} offen offset:{1024 * j} {OPT['ntw2']} lds"))
        ops[-1].append(f"s_add_u32 {sWOFF}, {sWOFF}, {32 * 4096}\ns_cmp_eq_u32 {sWOFF}, {384 * 4096}\ns_cselect_b32 {sWOFF}, 0, {sWOFF}")
        return ops

    def u_ops(st):
        ops = []
        for blk in range(5):
            ops.append([("u", st, f"buffer_load_dwordx4 {v(UB(st % 4, blk), 4)}, {v(vU)}, {sWS}, {sUOFF} offen offset:{256 * blk} sc1")])
        ops[-1].append(f"s_add_u32 {sUOFF}, {sUOFF}, 40960\ns_cmp_eq_u32 {sUOFF}, {12 * 40960}\ns_cselect_b32 {sUOFF}, 0, {sUOFF}")
        return ops

    def emit(op):
        for x in op:
            if isinstance(x, tuple):
                vm.op((x[0], x[1]), x[2])
            else:
                a(x)

    a.label("L_G2")
    stamp(6)
    a(f"s_setprio {OPT['gprio_m']}")
    for st in range(LA):
        for o in w2_ops(st):
            emit(o)
    wo_group(3)
    a(f"s_setprio {OPT['gprio_v']}")
    poll(vFU, 12, sleep=8)
    stamp(7)
    a(f"s_setprio {OPT['gprio_m']}")
    for sb in range(4):
        a(f"s_xor_b32 s3, s24, {sb}\ns_lshl_b32 s3, s3, 8\ns_add_u32 s3, s3, {GATE}\nbuffer_load_dword v{244 + 2 * sb}, v10, {sWS}, s3 offen sc1")
    a(f"s_lshl_b32 s3, s24, 5\nbuffer_load_ushort v252, v11, {sB2}, s3 offen")
    for st in range(LA):
        for o in u_ops(st):
            emit(o)
    hold = 12 - OPT["g2hold"]
    for s in range(12):
        if s + LA == OPT["g2miss"] and s < hold:
            a(f";@thr {OPT['thrh']}")
        ops = (w2_ops(s + LA) + u_ops(s + LA)) if s + LA < 12 else []
        if s == hold:
            for o in ops:
                emit(o)
            ops = []
            stamp(8)
            a(";@endthr")
            a(f"s_setprio {OPT['gprio_v']}")
            lds_wait(C_TD, 4, vCN, 12, sleep=OPT["tdsleep"])
            a(f"s_setprio {OPT['gprio_w']}")
        vm.wait(("u", s))
        if s < 11:
            stamp(1 + s, 2)
        for sb in range(4):
            for p in range(2):
                a(f"ds_read_b64_tr_b16 {v(WF(sb) + 2 * p, 2)}, {v(vR[sb])} offset:{W2R + 4096 * (s % 3) + 1024 * p}")
        k = 0
        for sb in range(4):
            a(f"s_waitcnt lgkmcnt({2 * (3 - sb)})")
            if s == 11 and sb == 3:
                wo_group(4)
            for blk in range(5):
                mfma16(GA(sb, blk), UB(s % 4, blk), WF(sb), "0" if s == 0 else None)
                k += 1
                if k % 2 == 0 and ops:
                    emit(ops.pop(0))
        assert not ops

    def wo_reads(t):
        out = []
        for blk in range(5):
            for p in range(2):
                if t < 4:
                    out.append(f"ds_read_b64_tr_b16 {v(WB(t, blk) + 2 * p, 2)}, {v(vA1)} offset:{(40 * t + 8 * p) * 160 + 32 * blk}")
                else:
                    out.append(f"ds_read_b64_tr_b16 {v(WB(t, blk) + 2 * p, 2)}, {v(vA2)} offset:{80 * p * 160 + 32 * blk}")
        return out

    if hold == 12:
        stamp(8)
        a(";@endthr")
    a(f"s_setprio {OPT['gprio_v']}")
    for t in range(3):
        for x in wo_reads(t):
            a(x)
    for sb in range(4):
        a(f"v_sub_f32 v{244 + 2 * sb}, 1.0, v{244 + 2 * sb}")
    a("v_lshlrev_b32 v252, 16, v252\nv_mul_f32 v252, v252, v244")
    for sb in range(4):
        for r in range(0, 20, 2):
            if sb == 0:
                a(f"v_pk_fma_f32 {v(GA(sb, 0) + r, 2)}, {v(GA(sb, 0) + r, 2)}, {v(244, 2)}, v[252:253] op_sel_hi:[1,0,0]")
            else:
                a(f"v_pk_mul_f32 {v(GA(sb, 0) + r, 2)}, {v(GA(sb, 0) + r, 2)}, {v(244 + 2 * sb, 2)} op_sel_hi:[1,0]")
    a("s_waitcnt vmcnt(0)")
    for t in range(3, 5):
        for x in wo_reads(t):
            a(x)
    vO1, vO2 = [2, 3, 4, 5], [6, 7, 8, 9]
    a(f"s_lshl_b32 s3, {sW}, 8\nv_lshlrev_b32 v2, 15, {v(vKQ)}\nv_lshl_add_u32 v2, {v(vL15)}, 4, v2\nv_add_u32 v2, s3, v2")
    for sb in range(1, 4):
        a(f"v_xor_b32 {v(vO1[sb])}, {256 * sb}, v2")
    for sb in range(4):
        a(f"v_lshrrev_b32 {v(vO2[sb])}, 1, {v(vO1[sb])}")
    a(f"s_lshl_b32 s26, {sW}, 19\ns_lshl_b32 s3, {sSB}, 10\ns_add_u32 s26, s26, s3\ns_lshr_b32 s3, s3, 1\ns_add_u32 s26, s26, {O1}")
    a(f"s_lshl_b32 s27, {sW}, 17\ns_add_u32 s27, s27, s3\ns_add_u32 s27, s27, {O2}\ns_add_u32 s29, s27, 0x10000")
    a(f"v_mul_u32_u24 v10, 1280, {v(vL15)}\nv_lshl_add_u32 v10, {v(vKQ)}, 3, v10")
    a(f"s_mul_i32 s28, s24, {16 * 1280}\ns_mul_i32 s3, {sDB}, 160\ns_add_u32 s28, s28, s3")
    a(f"v_lshl_add_u32 v11, v1, 4, {sM0}")
    for k in (1, 2, 3):
        a(f"v_xor_b32 v{244 + k}, {k << 15}, v11")
    a(f"v_and_b32 v12, 7, v1\ns_lshl_b32 s3, {sSB}, 2\ns_add_u32 s3, s3, {sW}\ns_lshl_b32 s3, s3, 10\ns_add_u32 s3, s3, {FLO}\nv_lshl_add_u32 v14, v12, 7, s3")
    if hold == 12:
        lds_wait(C_TD, 4, vCN, 12, sleep=OPT["tdsleep"])
    stamp(9)
    poll(14, 12, sleep=OPT["osleep"])
    stamp(10)
    vm = VM()

    def o_loads(t):
        if t < 4:
            for sb in range(4):
                vm.op(t, f"buffer_load_dwordx4 {v(OF(t % 3, sb), 4)}, {v(vO1[sb])}, {sWS}, s26 offen sc1")
            a("s_add_u32 s26, s26, 0x20000")
        else:
            for sb in range(4):
                for p in range(2):
                    vm.op(t, f"buffer_load_dwordx2 {v(OF(t % 3, sb) + 2 * p, 2)}, {v(vO2[sb])}, {sWS}, {'s29' if p else 's27'} offen sc1")

    for t in range(3):
        o_loads(t)
    for t in range(5):
        vm.wait(t, " lgkmcnt(0)" if t == 0 else "")
        for sb in ((0, 1, 2, 3) if t < 4 else (1, 2, 3, 0)):
            for blk in range(5):
                mfma16(GA(sb, blk), WB(t, blk), OF(t % 3, sb))
            if t == 4 and sb in (3, 0):
                k = {3: 1, 0: 2}[sb]
                for q in range(5):
                    a(f"ds_write_b128 v11, {v(GA(k, q), 4)} offset:{5120 * (k - 1) + 1024 * q}")
        if t + 3 < 5:
            o_loads(t + 3)
    for q in range(5):
        a(f"ds_write_b128 v11, {v(GA(3, q), 4)} offset:{5120 * 2 + 1024 * q}")
    a("s_waitcnt lgkmcnt(0)\ns_barrier")
    for q in range(5):
        for k in (1, 2, 3):
            a(f"ds_read_b128 {v(GA(k, q), 4)}, v{244 + k} offset:{5120 * (k - 1) + 1024 * q}")
    for q in range(5):
        a(f"s_waitcnt lgkmcnt({3 * (4 - q)})")
        d = GA(0, q)
        for r in (0, 2):
            a(f"v_pk_add_f32 {v(GA(1, q) + r, 2)}, {v(GA(1, q) + r, 2)}, {v(GA(2, q) + r, 2)}")
            a(f"v_pk_add_f32 {v(d + r, 2)}, {v(d + r, 2)}, {v(GA(3, q) + r, 2)}")
        for r in (0, 2):
            a(f"v_pk_add_f32 {v(d + r, 2)}, {v(d + r, 2)}, {v(GA(1, q) + r, 2)}")
        a(f"v_cvt_pk_bf16_f32 {v(d)}, {v(d)}, {v(d + 1)}\nv_cvt_pk_bf16_f32 {v(d + 1)}, {v(d + 2)}, {v(d + 3)}")
        a(f"buffer_store_dwordx2 {v(d, 2)}, v10, {sOUT}, s28 offen offset:{32 * q} {OPT['outfl']}")
    stamp(11)
    L = a.newlabel("noe")
    a(f"s_or_b32 s3, s2, {sW}\ns_cmp_lg_u32 s3, 0\ns_cbranch_scc1 {L}\ns_mov_b32 s85, {WS_E}")
    set_flag("s85", 16)
    a.label(L)
    dump_stamps()
    a.label("L_end")
    a("s_endpgm")


entry()
t_front()
t_att()
ROLE[0] = "M"
m_front()
m_mid()
m_tail()

lines = []
thr = -1
for l in a.lines:
    if l.startswith(";@thr"):
        thr = int(l.split()[1])
        continue
    if l.startswith(";@endthr"):
        thr = -1
        continue
    lines.append(l.replace("CODE_BYTES", "0x8000"))
    if thr >= 0 and l.startswith("buffer_") and "x4" in l.split()[0]:
        lines.append(f"s_waitcnt vmcnt({thr})")
lines = fix_hazards(lines, verbose=bool(OPT.get("v")))
lines = fix_align(lines, verbose=bool(OPT.get("v")))
from asmlib import sizes_of
total = sum(sizes_of(lines)) + 64
code_bytes = total // 128 * 128 - 256
lines = [l.replace("s_mov_b32 s70, 0x8000", f"s_mov_b32 s70, {hex(code_bytes)}") for l in lines]

ref = open(os.path.join(os.path.dirname(os.path.abspath(__file__)), "header.txt")).read()
out = ref
out += f"; @launch grid=(256,1,1) block=(512,1,1) lds={LDS_SIZE}\n"
out += f'.amdgcn_target "amdgcn-amd-amdhsa--gfx950"\n.text\n.globl {NAME}_kernel\n.p2align 8\n.type {NAME}_kernel,@function\n{NAME}_kernel:\n'
for l in lines:
    if l.startswith(";@"):
        continue
    out += (l if l.endswith(":") else "    " + l) + "\n"
out += f""".section .rodata,"a"
.p2align 6
.amdhsa_kernel {NAME}_kernel
  .amdhsa_next_free_vgpr 256
  .amdhsa_next_free_sgpr 102
  .amdhsa_accum_offset 256
  .amdhsa_group_segment_fixed_size 0
  .amdhsa_kernarg_size 96
  .amdhsa_user_sgpr_count 2
  .amdhsa_user_sgpr_kernarg_segment_ptr 1
  .amdhsa_system_sgpr_workgroup_id_x 1
.end_amdhsa_kernel
"""
open(sys.argv[1], "w").write(out)
print("code bytes", total, "lds", LDS_SIZE, "ws_end", hex(WS_END))
```
